```python
import torch

def _softmax(x, axis=-1):
    return torch.softmax(x, dim=axis)
def _gelu(x):
    return torch.nn.functional.gelu(x, approximate="tanh")
def _silu(x):
    return torch.nn.functional.silu(x)
def _sigmoid(x):
    return torch.sigmoid(x)
def _layernorm(x, axis=-1, eps=1e-5):
    m = x.mean(dim=axis, keepdim=True)
    v = x.var(dim=axis, keepdim=True, unbiased=False)
    return (x - m) / torch.sqrt(v + eps)
def _scatter_add(tgt, idx, src, axis=0):
    return tgt.clone().index_add_(axis, idx, src)
def _segment_sum(src, seg, n):
    out = torch.zeros((n,) + src.shape[1:], dtype=src.dtype)
    return out.index_add_(0, seg, src)
def _pad(x, pw):
    flat = tuple(v for pair in reversed(pw) for v in pair)
    return torch.nn.functional.pad(x, flat)

kernel_name = 'parallel_sum__sliding_block_cached__geglu_ffn__decode'

def setup_inputs():

    _w = (lambda a: (lambda t: t.to(torch.bfloat16) if t.is_floating_point() else t)(torch.as_tensor(a)))
    def _A_setup():
        B, Sq, D = 1, 1, 512
        Hq, Hkv, Sk, Dh = 32, 32, 32768, 128
        assert Hq % Hkv == 0, (Hq, Hkv)
        return {
            "x": _w((lambda *s: torch.randn(*s, dtype=torch.bfloat16) * 0.05)(B, Sq, D)),
            "k_cache": _w((lambda *s: torch.randn(*s, dtype=torch.bfloat16) * 3.2)(B, Hkv, Sk, Dh)),
            "v_cache": _w((lambda *s: torch.randn(*s, dtype=torch.bfloat16) * 1.6)(B, Hkv, Sk, Dh)),
            "wq": _w((lambda *s: torch.randn(*s, dtype=torch.bfloat16) * 3.2)(D, Hq * Dh) * (D ** -0.5)),
            "wo": _w((lambda *s: torch.randn(*s, dtype=torch.bfloat16) * 1.6)(Hq * Dh, D) * ((Hq * Dh) ** -0.5)),
        }
    _A_in = _A_setup()

    def _B_setup():
        B, S, D, F = 1, 1, 512, 1376
        return {
            "x": _w((lambda *s: torch.randn(*s, dtype=torch.bfloat16) * 0.05)(B, S, D)),
            "w_gate": _w((lambda *s: torch.randn(*s, dtype=torch.bfloat16) * 0.05)(D, F)),
            "w_up": _w((lambda *s: torch.randn(*s, dtype=torch.bfloat16) * 0.05)(D, F)),
            "w_down": _w((lambda *s: torch.randn(*s, dtype=torch.bfloat16) * 0.05)(F, D)),
        }
    _B_in = _B_setup()

    return {
        "A_x": _A_in["x"],
        "A_k_cache": _A_in["k_cache"],
        "A_v_cache": _A_in["v_cache"],
        "A_wq": _A_in["wq"],
        "A_wo": _A_in["wo"],
        "B_x": _B_in["x"],
        "B_w_gate": _B_in["w_gate"],
        "B_w_up": _B_in["w_up"],
        "B_w_down": _B_in["w_down"],
    }

def reference(A_x, A_k_cache, A_v_cache, A_wq, A_wo, B_x, B_w_gate, B_w_up, B_w_down):
    def _A_ref(x, k_cache, v_cache, wq, wo):
        B, Sq, D = x.shape
        Hq, Dh = 32, 128
        Hkv, Sk = k_cache.shape[1], k_cache.shape[2]
        W = min(4096, max(256, Sk // 4))
        rep = Hq // Hkv
        q = (lambda x, *d: x.permute(*d))((x @ wq).reshape(B, Sq, Hq, Dh), 0, 2, 1, 3)
        k = (lambda x, n, axis: torch.repeat_interleave(x, n, dim=axis))(k_cache[:, :, Sk - W:, :], rep, axis=1)
        v = (lambda x, n, axis: torch.repeat_interleave(x, n, dim=axis))(v_cache[:, :, Sk - W:, :], rep, axis=1)
        scores = torch.einsum("bhqd,bhkd->bhqk", q, k) * (Dh ** -0.5)
        p = _softmax(scores, axis=-1)
        o = torch.einsum("bhqk,bhkd->bhqd", p, v)
        return (lambda x, *d: x.permute(*d))(o, 0, 2, 1, 3).reshape(B, Sq, Hq * Dh) @ wo

    def _B_ref(x, w_gate, w_up, w_down):
        return (_gelu(x @ w_gate) * (x @ w_up)) @ w_down

    x = A_x
    xn = _layernorm(x, axis=-1)
    return x + _A_ref(xn, A_k_cache, A_v_cache, A_wq, A_wo) + _B_ref(xn, B_w_gate, B_w_up, B_w_down)
```

```python
import sys

NAME = "parallel_sum__sliding_block_cached__geglu_ffn__decode"

HEADER = """; Kernarg layout for this problem (96 bytes, ptrs only, base s[0:1]):
;
; Hand-offs are 16-byte pieces {value, tagA, value, tagB} written with sc1 stores and polled with sc1 loads;
"""

W_OFF = 0
REC0 = 0x10000
MLR = 0x100000
OREC = 0x110000
YREC = 0x160000
STAMP = 512 << 20
P0P = 0
QF = 16384
MX = 17408
OP = 17664
OPS = 544
YP = 22016
YPS = 288
LDS_BYTES = 26624

C_TAG = 0x9E3779B9
C_TAGB = 0x5BD1E995
SPIN_MAX = 1 << 18


def gen(pol="nt", stamps=False, rot=0, nv_early=8, ml_at=12, wo_first=False, prio=True, hpol="sc1"):
    L = []

    def A(s):
        L.append("    " + s)

    def C(s):
        L.append("    ; " + s)

    def LBL(s):
        L.append(s + ":")

    nstamp = [0]

    def STAMPX(tag):
        if stamps:
            i = nstamp[0]
            A(f"s_memrealtime s[{64 + 2 * i}:{65 + 2 * i}]")
            nstamp[0] += 1

    def dpp(op, d, s0, s1, ctrl, rm=0xF, bm=0xF):
        A(f"{op}_dpp v{d}, v{s0}, v{s1} {ctrl} row_mask:{rm:#x} bank_mask:{bm:#x}")

    def row_reduce(op, regs, steps=("quad_perm:[1,0,3,2]", "quad_perm:[2,3,0,1]", "row_half_mirror", "row_mirror")):
        for st in steps:
            for r in regs:
                dpp(op, r, r, r, st)
            if len(regs) < 3:
                A(f"s_nop {2 - len(regs)}")

    def cross_reduce(op, r, t, swaps=("16", "32")):
        for sw in swaps:
            A(f"v_mov_b32 v{t}, v{r}")
            A("s_nop 1")
            A(f"v_permlane{sw}_swap_b32 v{t}, v{r}")
            A(f"{op} v{r}, v{t}, v{r}")

    L.append(HEADER + f"; @launch grid=(256,1,1) block=(512,1,1) lds={LDS_BYTES}")
    L.append('.amdgcn_target "amdgcn-amd-amdhsa--gfx950"')
    L.append(".text")
    L.append(f".globl {NAME}_kernel")
    L.append(".p2align 8")
    L.append(f".type {NAME}_kernel,@function")
    L.append(f"{NAME}_kernel:")

    LANE = 1
    ME = [2, 3, 4, 5]
    Q = [6, 7, 8, 9]
    T = list(range(10, 32))
    KOFF = list(range(32, 48))
    AT = list(range(48, 64))
    KR = 64
    VR = 128
    X = 192
    XP = 196
    XO = 197
    WQ0, WQ1, WG, WU = 200, 204, 208, 212
    G0, G1 = 216, 220
    WO0, WO1, WD = 224, 228, 232
    AH = 236
    DPV = 240
    DY = 244
    vWO, vWD, vOG, vMLG = 248, 249, 250, 251
    vG = 252
    vWT = 253
    vR = 254
    sH, sS, sW = 3, 4, 5
    sTA, sTB = 33, 34

    STAMPX("entry")
    A("s_cmp_ge_u32 s2, 256")
    A("s_cbranch_scc1 L_end")
    A("s_load_dwordx16 s[8:23], s[0:1], 0")
    A("s_load_dwordx8 s[24:31], s[0:1], 64")
    if prio:
        A("s_setprio 3")
    A("v_lshrrev_b32 v10, 6, v0")
    A(f"v_and_b32 v{LANE}, 63, v0")
    A(f"s_lshr_b32 s{sH}, s2, 3")
    A(f"v_readfirstlane_b32 s{sW}, v10")
    A(f"s_and_b32 s{sS}, s2, 7")
    A(f"v_lshrrev_b32 v11, 4, v{LANE}")
    A(f"v_and_b32 v12, 15, v{LANE}")
    A(f"v_bfe_u32 v13, v{LANE}, 3, 1")
    A(f"v_and_b32 v14, 7, v{LANE}")
    A(f"s_lshl_b32 s6, s{sS}, 6")
    A(f"s_lshl_b32 s7, s{sW}, 3")
    A("s_add_u32 s6, s6, s7")
    A("v_lshl_add_u32 v15, v11, 1, s6")
    A(f"v_lshlrev_b32 v16, 4, v{LANE}")
    A("v_add_lshl_u32 v17, v15, v13, 1")
    A(f"s_lshl_b32 s42, s{sS}, 7")
    A(f"s_lshl_b32 s43, s{sH}, 2")
    A("s_add_u32 s42, s42, s43")
    A("v_mov_b32 v18, s42")
    A(f"s_lshl_b32 s43, s{sH}, 8")
    A("v_lshlrev_b32 v19, 13, v15")
    A("v_lshl_add_u32 v19, v12, 4, v19")
    A("v_add_u32 v19, s43, v19")
    A("v_add_u32 v20, 0x2000, v19")
    A(f"s_mul_i32 s44, s{sH}, 43")
    A("s_and_b32 s45, s44, 7")
    A("s_andn2_b32 s46, s44, 7")
    A("s_lshl_b32 s46, s46, 1")
    A("s_add_u32 s47, s45, 42")
    A("s_lshr_b32 s47, s47, 3")
    A("v_min_u32 v21, s47, v14")
    A("v_lshl_add_u32 v21, v21, 4, s46")
    A("s_movk_i32 s48, 2752")
    A("v_add_u32 v22, v15, v13")
    A("v_mad_u32_u24 v22, v22, s48, v21")
    A("v_xor_b32 v23, 1, v13")
    A("v_add_u32 v23, v15, v23")
    A("v_mad_u32_u24 v23, v23, s48, v21")
    A(f"s_lshl_b32 s49, s{sH}, 23")
    A(f"s_lshl_b32 s50, s{sS}, 17")
    A("s_add_u32 s49, s49, s50")
    A(f"s_add_u32 s49, s49, {28672 * 256}")
    A(f"v_lshl_add_u32 v{KOFF[0]}, v0, 4, s49")
    if rot == 0:
        for t in range(1, 16):
            A(f"v_add_u32 v{KOFF[t]}, {t * 8192:#x}, v{KOFF[0]}")
    else:
        A(f"v_mov_b32 v24, v{KOFF[0]}")
        A(f"s_mul_i32 s50, s{sH}, {rot}")
        for t in range(16):
            A(f"s_add_u32 s51, s50, {t}")
            A("s_and_b32 s51, s51, 15")
            A("s_lshl_b32 s51, s51, 13")
            A(f"v_add_u32 v{KOFF[t]}, s51, v24")
    A("s_waitcnt lgkmcnt(0)")
    STAMPX("kernarg")
    A(f"global_load_dwordx4 v[{X}:{X + 3}], v16, s[8:9]")
    A(f"global_load_ushort v{XP}, v17, s[8:9]")
    A(f"global_load_dword v{XO}, v18, s[8:9]")
    A(f"global_load_dwordx4 v[{WQ0}:{WQ0 + 3}], v19, s[14:15] {pol}")
    A(f"global_load_dwordx4 v[{WQ1}:{WQ1 + 3}], v20, s[14:15] {pol}")
    A(f"global_load_dwordx4 v[{WG}:{WG + 3}], v22, s[20:21] {pol}")
    A(f"global_load_dwordx4 v[{WU}:{WU + 3}], v23, s[22:23] {pol}")
    A(f"s_load_dword s32, s[30:31], {W_OFF}")
    if prio:
        A("s_setprio 2")
    for t in range(16):
        A(f"global_load_dwordx4 v[{KR + 4 * t}:{KR + 4 * t + 3}], v{KOFF[t]}, s[10:11] {pol}")
    if prio:
        A("s_setprio 1")
    STAMPX("K issued")
    C("lane masks")
    A("s_mov_b32 s36, 0xcccccccc")
    A("s_mov_b32 s37, 0xcccccccc")
    A("s_mov_b32 s38, 0xaaaaaaaa")
    A("s_mov_b32 s39, 0xaaaaaaaa")
    A("s_mov_b32 s40, 0x00ff00ff")
    A("s_mov_b32 s41, 0xff00ff00")
    A("s_mov_b32 s52, -1")
    A("s_mov_b32 s53, 0")
    A("s_mov_b32 s54, 0x01010101")
    A("s_mov_b32 s55, 0x01010101")
    A(f"v_and_b32 v24, 1, v{LANE}")
    A("v_lshlrev_b32 v24, 4, v24")
    A("v_mov_b32 v25, 0xffff")
    A("v_lshlrev_b32 v24, v24, v25")
    for r in range(4):
        m = (0x03030303 << (2 * r)) & 0xFFFFFFFF
        A(f"s_mov_b32 s56, {m:#x}")
        A(f"s_mov_b32 s57, {m:#x}")
        A(f"v_cndmask_b32 v{ME[r]}, 0, v24, s[56:57]")
    C("wo offset: (128h + 16w + 8(g&1) + 4b + (g>>1))*1024 + 128s + 16e")
    A("v_and_b32 v24, 1, v11")
    A("v_lshlrev_b32 v24, 3, v24")
    A("v_lshl_add_u32 v24, v13, 2, v24")
    A("v_lshrrev_b32 v25, 1, v11")
    A("v_add_u32 v24, v24, v25")
    A(f"s_lshl_b32 s56, s{sH}, 7")
    A(f"s_lshl_b32 s57, s{sW}, 4")
    A("s_add_u32 s56, s56, s57")
    A("v_add_u32 v24, s56, v24")
    A(f"s_lshl_b32 s57, s{sS}, 7")
    A("v_lshl_add_u32 v25, v14, 4, s57")
    A(f"v_lshl_add_u32 v{vWO}, v24, 10, v25")
    C("w_down: r = 8w + 2g + b ; row = 43h + min(r,42)")
    A("v_lshl_add_u32 v24, v11, 1, v13")
    A(f"v_add_u32 v{vR}, s7, v24")
    A(f"v_min_u32 v24, 42, v{vR}")
    A("v_add_u32 v26, s44, v24")
    A(f"v_lshl_add_u32 v{vWD}, v26, 10, v25")
    A("v_add_u32 v24, s45, v24")
    A(f"v_lshlrev_b32 v31, 2, v24")
    C("gather offsets")
    A(f"v_lshrrev_b32 v24, 3, v{LANE}")
    A(f"s_lshl_b32 s56, s{sH}, 14")
    A(f"s_lshl_b32 s57, s{sW}, 8")
    A("s_add_u32 s56, s56, s57")
    A(f"s_add_u32 s56, s56, {REC0:#x}")
    A("v_lshlrev_b32 v25, 11, v24")
    A("v_lshl_add_u32 v25, v14, 4, v25")
    A(f"v_add_u32 v{vG}, s56, v25")
    A(f"s_lshl_b32 s56, s{sH}, 13")
    A(f"s_lshl_b32 s57, s{sW}, 7")
    A("s_add_u32 s56, s56, s57")
    A(f"s_add_u32 s56, s56, {OREC:#x}")
    A("v_lshlrev_b32 v25, 10, v24")
    A("v_lshl_add_u32 v25, v14, 4, v25")
    A(f"v_add_u32 v{vOG}, s56, v25")
    A(f"s_lshl_b32 s56, s{sH}, 10")
    A(f"s_add_u32 s56, s56, {MLR:#x}")
    A(f"v_lshl_add_u32 v{vMLG}, v{LANE}, 4, s56")
    C("LDS write addresses of the phase-0 partials: v29 (q), v30 (gate/up)")
    A("v_lshrrev_b32 v24, 1, v11")
    A(f"s_lshl_b32 s56, s{sW}, 11")
    A("v_lshl_add_u32 v25, v24, 10, s56")
    A("v_and_b32 v26, 1, v11")
    A("v_lshl_add_u32 v25, v26, 4, v25")
    A("v_lshl_add_u32 v29, v12, 5, v25")
    A("v_lshl_add_u32 v30, v14, 5, v25")
    A("v_xor_b32 v26, v24, v13")
    A("v_lshl_add_u32 v30, v26, 8, v30")
    A("v_add_u32 v30, 512, v30")

    C("layernorm")
    A("s_waitcnt vmcnt(20)")
    STAMPX("x landed")
    for k in range(4):
        A(f"v_lshlrev_b32 v{10 + 2 * k}, 16, v{X + k}")
        A(f"v_and_b32 v{11 + 2 * k}, 0xffff0000, v{X + k}")
    A("v_add_f32 v18, v10, v11")
    A("v_add_f32 v19, v12, v13")
    A("v_add_f32 v20, v14, v15")
    A("v_add_f32 v21, v16, v17")
    A("v_add_f32 v18, v18, v19")
    A("v_add_f32 v20, v20, v21")
    A("v_add_f32 v18, v18, v20")
    A("s_nop 1")
    row_reduce("v_add_f32", [18])
    cross_reduce("v_add_f32", 18, 19)
    A("v_mul_f32 v18, 0x3b000000, v18")
    for k in range(8):
        A(f"v_sub_f32 v{10 + k}, v{10 + k}, v18")
    A("v_mul_f32 v19, v10, v10")
    A("v_mul_f32 v20, v11, v11")
    for k in range(2, 8, 2):
        A(f"v_fmac_f32 v19, v{10 + k}, v{10 + k}")
        A(f"v_fmac_f32 v20, v{11 + k}, v{11 + k}")
    A("v_add_f32 v19, v19, v20")
    A("s_nop 1")
    row_reduce("v_add_f32", [19])
    cross_reduce("v_add_f32", 19, 20)
    A("v_mul_f32 v19, 0x3b000000, v19")
    A("v_cvt_pk_bf16_f32 v20, v18, v19")
    A("v_lshlrev_b32 v18, 16, v20")
    A("v_and_b32 v19, 0xffff0000, v20")
    A("v_add_f32 v19, 0x3727c5ac, v19")
    A("v_cvt_pk_bf16_f32 v19, v19, v19")
    A("v_lshlrev_b32 v19, 16, v19")
    A("v_sqrt_f32 v19, v19")
    A(f"v_lshlrev_b32 v21, 16, v{XP}")
    A("v_cvt_pk_bf16_f32 v19, v19, v19")
    A("v_lshlrev_b32 v19, 16, v19")
    A("v_rcp_f32 v20, v19")
    A("v_sub_f32 v21, v21, v18")
    A("v_cvt_pk_bf16_f32 v21, v21, v21")
    A("v_lshlrev_b32 v21, 16, v21")
    A("v_mul_f32 v22, v21, v20")
    A("v_fma_f32 v23, -v22, v19, v21")
    A("v_fmac_f32 v22, v23, v20")
    A("v_cvt_pk_bf16_f32 v22, v22, v22")
    for r in range(4):
        A(f"v_and_b32 v{24 + r}, v22, v{ME[r]}")
    A("s_nop 0")
    A("s_waitcnt vmcnt(16)")
    STAMPX("P0 weights landed")
    D0, D1, DG, DU = 48, 52, 56, 60
    A(f"v_mfma_f32_16x16x32_bf16 v[{D0}:{D0 + 3}], v[24:27], v[{WQ0}:{WQ0 + 3}], 0")
    A(f"v_mfma_f32_16x16x32_bf16 v[{D1}:{D1 + 3}], v[24:27], v[{WQ1}:{WQ1 + 3}], 0")
    A(f"v_mfma_f32_16x16x32_bf16 v[{DG}:{DG + 3}], v[24:27], v[{WG}:{WG + 3}], 0")
    A(f"v_mfma_f32_16x16x32_bf16 v[{DU}:{DU + 3}], v[24:27], v[{WU}:{WU + 3}], 0")
    A("s_nop 7")
    for r in range(4):
        A(f"v_cndmask_b32 v{D0 + r}, v{D1 + r}, v{D0 + r}, s[52:53]")
    for r in range(4):
        A(f"v_cndmask_b32 v{DG + r}, v{DU + r}, v{DG + r}, s[40:41]")
    A(f"ds_write_b128 v29, v[{D0}:{D0 + 3}] offset:{P0P}")
    A(f"ds_write_b128 v30, v[{DG}:{DG + 3}] offset:{P0P}")
    A("s_waitcnt lgkmcnt(0)")
    A(f"s_add_u32 s{sTA}, s32, {C_TAG:#x}")
    A(f"s_xor_b32 s{sTB}, s{sTA}, {C_TAGB:#x}")
    A("s_barrier")
    STAMPX("barrier1")
    A(f"s_cmp_ge_u32 s{sW}, 2")
    A("s_cbranch_scc1 L_nopub0")
    C("waves 0,1: sum the 16 partials, publish 64 pieces each")
    A(f"s_lshl_b32 s56, s{sW}, 9")
    A(f"v_lshl_add_u32 v10, v{LANE}, 3, s56")
    B0 = 216
    for p in range(16):
        A(f"ds_read_b64 v[{B0 + 2 * p}:{B0 + 2 * p + 1}], v10 offset:{P0P + p * 1024}")
    A("s_lshl_b32 s56, s2, 11")
    A(f"s_lshl_b32 s57, s{sW}, 10")
    A("s_add_u32 s56, s56, s57")
    A(f"s_add_u32 s56, s56, {REC0:#x}")
    A(f"v_lshl_add_u32 v11, v{LANE}, 4, s56")
    A(f"v_mov_b32 v13, s{sTA}")
    A(f"v_mov_b32 v15, s{sTB}")
    A("s_waitcnt lgkmcnt(0)")
    n = 16
    while n > 1:
        n //= 2
        for p in range(n):
            for c in range(2):
                dst = B0 + 2 * p + c if n > 1 else 12 + 2 * c
                A(f"v_add_f32 v{dst}, v{B0 + 2 * p + c}, v{B0 + 2 * (p + n) + c}")
    A(f"global_store_dwordx4 v11, v[12:15], s[30:31] {hpol}")
    LBL("L_nopub0")
    STAMPX("published0")
    A(f"global_load_dwordx4 v[{G0}:{G0 + 3}], v{vG}, s[30:31] {hpol}")
    A(f"global_load_dwordx4 v[{G1}:{G1 + 3}], v{vG}, s[30:31] offset:128 {hpol}")

    def vload(t):
        A(f"global_load_dwordx4 v[{VR + 4 * t}:{VR + 4 * t + 3}], v{KOFF[t]}, s[12:13] {pol}")

    def wload():
        A(f"global_load_dwordx4 v[{WD}:{WD + 3}], v{vWD}, s[24:25] {pol}")
        A(f"global_load_dwordx4 v[{WO0}:{WO0 + 3}], v{vWO}, s[16:17] {pol}")
        A(f"global_load_dwordx4 v[{WO1}:{WO1 + 3}], v{vWO}, s[16:17] offset:2048 {pol}")

    n_after_g = nv_early
    if wo_first:
        wload()
        n_after_g += 3
    for t in range(nv_early):
        vload(t)
    if prio:
        A("s_setprio 0")
    STAMPX("V early issued")
    A(f"s_mov_b32 s58, {SPIN_MAX}")
    A(f"s_waitcnt vmcnt({n_after_g})")
    LBL("L_chk0")
    A(f"v_cmp_ne_u32 vcc, s{sTA}, v{G0 + 1}")
    A(f"v_cmp_ne_u32 s[56:57], s{sTB}, v{G0 + 3}")
    A(f"v_cmp_ne_u32 s[60:61], s{sTA}, v{G1 + 1}")
    A(f"v_cmp_ne_u32 s[62:63], s{sTB}, v{G1 + 3}")
    A("s_or_b64 vcc, vcc, s[56:57]")
    A("s_or_b64 s[60:61], s[60:61], s[62:63]")
    A("s_or_b64 vcc, vcc, s[60:61]")
    A("s_cbranch_scc0 L_ok0")
    A("s_sub_u32 s58, s58, 1")
    A("s_cbranch_scc1 L_ok0")
    A(f"global_load_dwordx4 v[{G0}:{G0 + 3}], v{vG}, s[30:31] {hpol}")
    A(f"global_load_dwordx4 v[{G1}:{G1 + 3}], v{vG}, s[30:31] offset:128 {hpol}")
    A("s_waitcnt vmcnt(0)")
    A("s_branch L_chk0")
    LBL("L_ok0")
    STAMPX("G ok")
    C("sum over the 8 producers (lane bits 5,4,3); column = 32w + 16*bit4 + 2*(l&7) + bit5")
    A(f"v_permlane32_swap_b32 v{G0}, v{G0 + 2}")
    A(f"v_permlane32_swap_b32 v{G1}, v{G1 + 2}")
    A(f"v_add_f32 v10, v{G0}, v{G0 + 2}")
    A(f"v_add_f32 v11, v{G1}, v{G1 + 2}")
    A(f"v_bfe_u32 v12, v{LANE}, 4, 1")
    A(f"v_and_b32 v13, 7, v{LANE}")
    A("v_permlane16_swap_b32 v10, v11")
    A("v_add_f32 v10, v10, v11")
    A(f"v_lshrrev_b32 v14, 5, v{LANE}")
    A("v_lshl_add_u32 v14, v13, 1, v14")
    dpp("v_add_f32", 10, 10, 10, "row_ror:8")
    A("v_lshl_add_u32 v14, v12, 4, v14")
    A(f"s_lshl_b32 s56, s{sW}, 7")
    A("v_lshl_add_u32 v14, v14, 2, s56")
    A(f"ds_write_b32 v14, v10 offset:{QF}")
    A(f"v_and_b32 v12, 15, v{LANE}")
    A("v_lshlrev_b32 v12, 5, v12")
    A("s_waitcnt lgkmcnt(0)")
    A("s_barrier")
    STAMPX("barrier2")
    A(f"ds_read_b128 v[16:19], v12 offset:{QF}")
    A(f"ds_read_b128 v[20:23], v12 offset:{QF + 16}")
    A(f"ds_read_b32 v24, v31 offset:{QF + 512}")
    A(f"ds_read_b32 v25, v31 offset:{QF + 768}")
    A("s_waitcnt lgkmcnt(0)")
    for k in range(4):
        A(f"v_cvt_pk_bf16_f32 v{Q[k]}, v{16 + 2 * k}, v{17 + 2 * k}")
    C("scores")
    nextv = nv_early
    for grp in range(4):
        for j in range(4):
            for t in range(4 * grp, 4 * grp + 4):
                src2 = "0" if j == 0 else f"v{AT[t]}"
                A(f"v_dot2_f32_bf16 v{AT[t]}, v{KR + 4 * t + j}, v{Q[j]}, {src2}")
        k = (16 - nv_early + 3 - grp) // 4
        for _ in range(k):
            if nextv < 16:
                vload(nextv)
                nextv += 1
    assert nextv == 16
    if not wo_first:
        wload()
    STAMPX("all issued")
    C("GEGLU activation for this lane's hidden unit")
    A("s_waitcnt lgkmcnt(0)")
    A("v_cvt_pk_bf16_f32 v24, v24, v25")
    A("v_lshlrev_b32 v26, 16, v24")
    A("v_and_b32 v25, 0xffff0000, v24")
    A("v_mul_f32 v27, v26, v26")
    A("v_mul_f32 v27, v27, v26")
    A("v_mov_b32 v28, v26")
    A("v_fmac_f32 v28, 0x3d372713, v27")
    A("v_mul_f32 v28, 0xc0135761, v28")
    A("v_exp_f32 v28, v28")
    for t in range(8):
        dpp("v_add_f32", AT[t], AT[t], AT[t], "row_ror:8", bm=0x3)
        dpp("v_add_f32", AT[t], AT[t + 8], AT[t + 8], "row_ror:8", bm=0xC)
    A("v_add_f32 v28, 1.0, v28")
    A("v_rcp_f32 v28, v28")
    for t in range(4):
        dpp("v_add_f32", AT[t], AT[t], AT[t], "row_half_mirror", bm=0x5)
        dpp("v_add_f32", AT[t], AT[t + 4], AT[t + 4], "row_half_mirror", bm=0xA)
    A("v_mul_f32 v28, v26, v28")
    A("v_cvt_pk_bf16_f32 v28, v28, v28")
    for t in range(4):
        dpp("v_add_f32", AT[t], AT[t], AT[t], "quad_perm:[2,3,0,1]")
    A("v_lshlrev_b32 v28, 16, v28")
    A(f"v_cndmask_b32 v{AT[0]}, v{AT[0]}, v{AT[2]}, s[36:37]")
    A(f"v_cndmask_b32 v{AT[1]}, v{AT[1]}, v{AT[3]}, s[36:37]")
    A("v_mul_f32 v28, v28, v25")
    A(f"v_cmp_gt_u32 vcc, 43, v{vR}")
    dpp("v_add_f32", AT[0], AT[0], AT[0], "quad_perm:[1,0,3,2]")
    dpp("v_add_f32", AT[1], AT[1], AT[1], "quad_perm:[1,0,3,2]")
    A("v_cndmask_b32 v28, 0, v28, vcc")
    A(f"v_cndmask_b32 v10, v{AT[0]}, v{AT[1]}, s[38:39]")
    A("v_cvt_pk_bf16_f32 v28, v28, v28")
    A("v_cvt_pk_bf16_f32 v10, v10, v10")
    for r in range(4):
        A(f"v_and_b32 v{AH + r}, v28, v{ME[r]}")
    A("v_lshlrev_b32 v10, 16, v10")
    A("v_mul_f32 v10, 0x3db504f3, v10")
    A("v_cvt_pk_bf16_f32 v10, v10, v10")
    A("v_lshlrev_b32 v10, 16, v10")
    A("v_mov_b32 v11, v10")
    A("s_nop 1")
    row_reduce("v_max_f32", [11])
    cross_reduce("v_max_f32", 11, 12)
    A(f"s_lshl_b32 s56, s{sW}, 2")
    A("v_mov_b32 v12, s56")
    A("s_mov_b64 exec, 1")
    A(f"ds_write_b32 v12, v11 offset:{MX}")
    A("s_mov_b64 exec, -1")
    A("v_mov_b32 v12, 0")
    A("s_waitcnt lgkmcnt(0)")
    A("s_barrier")
    STAMPX("barrier3")
    A(f"ds_read_b128 v[16:19], v12 offset:{MX}")
    A(f"ds_read_b128 v[20:23], v12 offset:{MX + 16}")
    A(f"s_lshl_b32 s56, s2, 7")
    A(f"s_lshl_b32 s57, s{sW}, 4")
    A("s_add_u32 s56, s56, s57")
    A(f"s_add_u32 s56, s56, {MLR:#x}")
    A("v_mov_b32 v11, s56")
    A(f"v_mov_b32 v13, s{sTA}")
    A(f"v_mov_b32 v15, s{sTB}")
    A("s_waitcnt lgkmcnt(0)")
    A("v_max3_f32 v16, v16, v17, v18")
    A("v_max3_f32 v19, v19, v20, v21")
    A("v_max3_f32 v16, v16, v22, v23")
    A("v_max_f32 v14, v16, v19")
    A("v_sub_f32 v10, v10, v14")
    A("v_mul_f32 v10, 0x3fb8aa3b, v10")
    A("v_exp_f32 v10, v10")
    A("s_nop 0")
    A("v_mov_b32 v12, v10")
    A("v_cvt_pk_bf16_f32 v10, v10, v10")
    A("s_nop 0")
    steps = ["quad_perm:[1,0,3,2]", "quad_perm:[2,3,0,1]", "row_half_mirror", "row_mirror"]
    for t in range(16):
        if t < 4:
            dpp("v_add_f32", 12, 12, 12, steps[t])
        if t == 4:
            A("v_mov_b32 v16, v12")
        if t == 5:
            A("v_permlane16_swap_b32 v16, v12")
            A("v_add_f32 v12, v16, v12")
            A("v_mov_b32 v16, v12")
        if t == 6:
            A("v_permlane32_swap_b32 v16, v12")
            A("v_add_f32 v12, v16, v12")
        if t == 7:
            A("s_mov_b64 exec, 1")
            A(f"global_store_dwordx4 v11, v[12:15], s[30:31] {hpol}")
            A("s_mov_b64 exec, -1")
        for r in range(4):
            dpp("v_and_b32", KR + 4 * t + r, 10, ME[r], f"row_newbcast:{t}")
    C("addresses for the tail")
    A(f"v_lshrrev_b32 v16, 4, v{LANE}")
    A(f"v_and_b32 v17, 15, v{LANE}")
    A(f"s_mul_i32 s56, s{sW}, {OPS}")
    A("v_lshl_add_u32 v18, v17, 5, s56")
    A("v_lshl_add_u32 v18, v16, 4, v18")
    A(f"v_and_b32 v17, 7, v{LANE}")
    A(f"v_lshrrev_b32 v19, 3, v{LANE}")
    A(f"s_lshl_b32 s56, s{sW}, 6")
    A("v_lshl_add_u32 v20, v19, 3, s56")
    A(f"v_mov_b32 v21, {OPS}")
    A("v_mad_u32_u24 v21, v17, v21, v20")
    A(f"v_mov_b32 v22, {YPS}")
    A("v_mad_u32_u24 v22, v17, v22, v20")
    A("s_lshl_b32 s56, s2, 10")
    A(f"s_lshl_b32 s57, s{sW}, 7")
    A("s_add_u32 s56, s56, s57")
    A(f"s_add_u32 s56, s56, {OREC:#x}")
    A("v_lshl_add_u32 v23, v19, 4, s56")
    A("s_lshl_b32 s56, s2, 9")
    A("s_add_u32 s56, s56, s57")
    A(f"s_add_u32 s56, s56, {YREC:#x}")
    A("v_lshl_add_u32 v24, v19, 4, s56")
    A("v_lshrrev_b32 v25, 1, v16")
    A(f"v_mul_u32_u24 v25, {YPS}, v25")
    A(f"s_mul_i32 s56, s{sW}, {2 * YPS}")
    A("v_add_u32 v25, s56, v25")
    A("v_and_b32 v26, 1, v16")
    A("v_lshl_add_u32 v25, v26, 4, v25")
    A("v_lshl_add_u32 v25, v17, 5, v25")
    A(f"v_and_b32 v26, 31, v{LANE}")
    A(f"s_lshl_b32 s56, s{sS}, 9")
    A(f"s_lshl_b32 s57, s{sH}, 4")
    A("s_add_u32 s56, s56, s57")
    A(f"s_add_u32 s56, s56, {YREC:#x}")
    A("v_lshl_add_u32 v26, v26, 12, s56")
    STAMPX("PV start")
    tail_ops = (0 if wo_first else 3) + 1
    MLG = G0
    for t in range(16):
        if t == ml_at:
            A(f"global_load_dwordx4 v[{MLG}:{MLG + 3}], v{vMLG}, s[30:31] {hpol}")
            tail_ops += 1
        A(f"s_waitcnt vmcnt({15 - t + tail_ops})")
        c = "0" if t == 0 else f"v[{DPV}:{DPV + 3}]"
        A(f"v_mfma_f32_16x16x32_bf16 v[{DPV}:{DPV + 3}], v[{KR + 4 * t}:{KR + 4 * t + 3}], v[{VR + 4 * t}:{VR + 4 * t + 3}], {c}")
    STAMPX("V landed")
    A("s_mov_b64 exec, s[52:53]")
    A("s_nop 6")
    A(f"ds_write_b128 v18, v[{DPV}:{DPV + 3}] offset:{OP}")
    A("s_mov_b64 exec, -1")
    A("s_waitcnt lgkmcnt(0)")
    A("s_barrier")
    A(f"ds_read_b64 v[16:17], v21 offset:{OP}")
    A("s_waitcnt lgkmcnt(0)")
    dpp("v_add_f32", 14, 17, 17, steps[0])
    dpp("v_add_f32", 12, 16, 16, steps[0])
    A("s_nop 0")
    row_reduce("v_add_f32", [14, 12], steps[1:3])
    A("s_mov_b64 exec, s[54:55]")
    A(f"global_store_dwordx4 v23, v[12:15], s[30:31] {hpol}")
    A("s_mov_b64 exec, -1")
    STAMPX("o published")
    C("softmax weights of the 8 slices")
    A(f"s_mov_b32 s58, {SPIN_MAX}")
    A("s_waitcnt vmcnt(1)")
    LBL("L_chk1")
    A(f"v_cmp_ne_u32 vcc, s{sTA}, v{MLG + 1}")
    A(f"v_cmp_ne_u32 s[56:57], s{sTB}, v{MLG + 3}")
    A("s_or_b64 vcc, vcc, s[56:57]")
    A("s_cbranch_scc0 L_ok1")
    A("s_sub_u32 s58, s58, 1")
    A("s_cbranch_scc1 L_ok1")
    A(f"global_load_dwordx4 v[{MLG}:{MLG + 3}], v{vMLG}, s[30:31] {hpol}")
    A("s_waitcnt vmcnt(0)")
    A("s_branch L_chk1")
    LBL("L_ok1")
    OG = G1
    A(f"global_load_dwordx4 v[{OG}:{OG + 3}], v{vOG}, s[30:31] {hpol}")
    C("w_down part of the output projection while the hand-off is in flight")
    A(f"v_mfma_f32_16x16x32_bf16 v[{DY}:{DY + 3}], v[{AH}:{AH + 3}], v[{WD}:{WD + 3}], 0")
    A(f"v_mov_b32 v10, v{MLG + 2}")
    A("s_nop 1")
    dpp("v_max_f32", 10, 10, 10, "row_ror:8")
    cross_reduce("v_max_f32", 10, 11)
    A(f"v_sub_f32 v10, v{MLG + 2}, v10")
    A("v_mul_f32 v10, 0x3fb8aa3b, v10")
    A("v_exp_f32 v10, v10")
    A("s_nop 0")
    A(f"v_mul_f32 v11, v10, v{MLG}")
    A("s_nop 1")
    row_reduce("v_add_f32", [11])
    cross_reduce("v_add_f32", 11, 16)
    A("v_rcp_f32 v11, v11")
    A("s_nop 0")
    A(f"v_mul_f32 v{vWT}, v10, v11")
    STAMPX("weights")
    A(f"s_mov_b32 s58, {SPIN_MAX}")
    A("s_waitcnt vmcnt(0)")
    LBL("L_chk2")
    A(f"v_cmp_ne_u32 vcc, s{sTA}, v{OG + 1}")
    A(f"v_cmp_ne_u32 s[56:57], s{sTB}, v{OG + 3}")
    A("s_or_b64 vcc, vcc, s[56:57]")
    A("s_cbranch_scc0 L_ok2")
    A("s_sub_u32 s58, s58, 1")
    A("s_cbranch_scc1 L_ok2")
    A(f"global_load_dwordx4 v[{OG}:{OG + 3}], v{vOG}, s[30:31] {hpol}")
    A("s_waitcnt vmcnt(0)")
    A("s_branch L_chk2")
    LBL("L_ok2")
    STAMPX("O ok")
    A(f"v_mul_f32 v10, v{vWT}, v{OG}")
    A(f"v_mul_f32 v11, v{vWT}, v{OG + 2}")
    A("s_nop 1")
    A("v_permlane32_swap_b32 v10, v11")
    A("v_add_f32 v10, v10, v11")
    cross_reduce("v_add_f32", 10, 11, swaps=("16",))
    A("s_nop 1")
    dpp("v_add_f32", 10, 10, 10, "row_ror:8")
    A("v_cvt_pk_bf16_f32 v10, v10, v10")
    A("s_nop 1")
    for k in range(2):
        for b4 in range(2):
            for b in range(2):
                p = 4 * b4 + 2 * b + k
                A(f"v_mov_b32_dpp v{16 + k}, v10 row_newbcast:{p} row_mask:{(0x5, 0xa)[b4]:#x} bank_mask:{(0x3, 0xc)[b]:#x}")
    for k in range(2):
        for r in range(4):
            A(f"v_and_b32 v{48 + 4 * k + r}, v{16 + k}, v{ME[r]}")
    A("s_nop 0")
    A(f"v_mfma_f32_16x16x32_bf16 v[{DY}:{DY + 3}], v[48:51], v[{WO0}:{WO0 + 3}], v[{DY}:{DY + 3}]")
    A(f"v_mfma_f32_16x16x32_bf16 v[{DY}:{DY + 3}], v[52:55], v[{WO1}:{WO1 + 3}], v[{DY}:{DY + 3}]")
    A("s_mov_b64 exec, s[40:41]")
    A("s_nop 6")
    A(f"ds_write_b128 v25, v[{DY}:{DY + 3}] offset:{YP}")
    A("s_mov_b64 exec, -1")
    A("s_waitcnt lgkmcnt(0)")
    A("s_barrier")
    A(f"s_cmp_ge_u32 s{sW}, 4")
    A("s_cbranch_scc1 L_final")
    A(f"ds_read_b64 v[16:17], v22 offset:{YP}")
    A(f"ds_read_b64 v[18:19], v22 offset:{YP + 8 * YPS}")
    A("s_waitcnt lgkmcnt(0)")
    A("v_add_f32 v14, v17, v19")
    A("v_add_f32 v12, v16, v18")
    A("s_nop 0")
    row_reduce("v_add_f32", [14, 12], steps[:3])
    A("s_mov_b64 exec, s[54:55]")
    A(f"global_store_dwordx4 v24, v[12:15], s[30:31] {hpol}")
    if stamps:
        A("s_mov_b64 exec, -1")
        STAMPX("y published / final done")
        nstamp[0] -= 1
        A("s_branch L_stamps")
    else:
        A("s_endpgm")
    LBL("L_final")
    A(f"s_cmp_lg_u32 s{sW}, 4")
    if stamps:
        STAMPX("y published / final done")
        nstamp[0] -= 1
        A("s_cbranch_scc1 L_stamps")
    else:
        A("s_cbranch_scc1 L_end")
    A(f"s_mov_b32 s58, {SPIN_MAX}")
    A("s_mov_b64 exec, s[52:53]")
    LBL("L_chk3")
    A(f"global_load_dwordx4 v[16:19], v26, s[30:31] {hpol}")
    A("s_waitcnt vmcnt(0)")
    A(f"v_cmp_ne_u32 vcc, s{sTA}, v17")
    A(f"v_cmp_ne_u32 s[56:57], s{sTB}, v19")
    A("s_or_b64 vcc, vcc, s[56:57]")
    A("s_cbranch_scc0 L_ok3")
    A("s_sub_u32 s58, s58, 1")
    A("s_cbranch_scc0 L_chk3")
    LBL("L_ok3")
    A("s_mov_b64 exec, -1")
    A("v_permlane16_swap_b32 v16, v18")
    A("v_add_f32 v16, v16, v18")
    A(f"v_lshlrev_b32 v10, 16, v{XO}")
    A(f"v_and_b32 v11, 0xffff0000, v{XO}")
    row_reduce("v_add_f32", [16])
    A("v_readlane_b32 s56, v16, 16")
    A("v_add_f32 v10, v10, v16")
    A("v_mov_b32 v12, s42")
    A("v_add_f32 v11, s56, v11")
    A("v_cvt_pk_bf16_f32 v10, v10, v11")
    A("s_mov_b64 exec, 1")
    A("global_store_dword v12, v10, s[26:27]")
    A("s_cmp_lg_u32 s2, 0")
    A("s_cbranch_scc1 L_nowbump")
    A(f"v_mov_b32 v12, {W_OFF}")
    A(f"global_store_dword v12, v13, s[30:31] {hpol}")
    LBL("L_nowbump")
    if stamps:
        A("s_mov_b64 exec, -1")
        STAMPX("y published / final done")
        LBL("L_stamps")
        ns = nstamp[0]
        nq = (ns + 1) // 2
        A("s_waitcnt lgkmcnt(0)")
        A("s_lshl_b32 s56, s2, 3")
        A(f"s_add_u32 s56, s56, s{sW}")
        A(f"s_mul_i32 s56, s56, {nq * 16}")
        A(f"s_add_u32 s56, s56, {STAMP:#x}")
        A("v_mov_b32 v10, s56")
        A("s_mov_b64 exec, 1")
        for q in range(nq):
            for j in range(4):
                A(f"v_mov_b32 v{12 + j}, s{min(64 + 4 * q + j, 64 + 2 * ns - 1)}")
            A(f"global_store_dwordx4 v10, v[12:15], s[30:31] offset:{q * 16}")
            A("s_nop 2")
        print("stamps per wave:", nq * 2, file=sys.stderr)
    LBL("L_end")
    A("s_endpgm")
    L.append('.section .rodata,"a"')
    L.append(".p2align 6")
    L.append(f".amdhsa_kernel {NAME}_kernel")
    L.append("  .amdhsa_next_free_vgpr 256")
    L.append("  .amdhsa_next_free_sgpr 102")
    L.append("  .amdhsa_accum_offset 256")
    L.append("  .amdhsa_group_segment_fixed_size 0")
    L.append("  .amdhsa_kernarg_size 96")
    L.append("  .amdhsa_user_sgpr_count 2")
    L.append("  .amdhsa_user_sgpr_kernarg_segment_ptr 1")
    L.append("  .amdhsa_system_sgpr_workgroup_id_x 1")
    L.append("  .amdhsa_float_denorm_mode_32 3")
    L.append(".end_amdhsa_kernel")
    return "\n".join(L) + "\n"


if __name__ == "__main__":
    out = sys.argv[1]
    kw = {}
    for a in sys.argv[2:]:
        k, v = a.split("=")
        try:
            v = int(v)
        except ValueError:
            pass
        kw[k] = v
    open(out, "w").write(gen(**kw))
```

```python
import sys
from gen import NAME, HEADER

W_OFF = 0
REC0 = 0x10000
MLR = 0x100000
OREC = 0x110000
YREC = 0x160000
STAMP = 512 << 20
P0P = 0
QF = 8192
CNT = 9216
MX = 9248
OP = 9472
OPS = 544
YP = OP + 8 * OPS
YPS = 288
LDS_BYTES = YP + 16 * YPS

C_TAG = 0x9E3779B9
C_TAGB = 0x5BD1E995
SPIN_MAX = 1 << 18
ALL_STAMPS = ["entry", "kernarg", "x", "p0w", "bar1", "gissue", "gok", "qok", "stml", "pvstart", "mlok", "vland", "opub", "wts", "ook", "end"]


def gen(pol="nt", stamps="", rot=0, D=5, g_after=11, ml_after=11, w_after=15, k_pre=2, prio=0, hpol="sc1", chunk=36, p0pol=None, wpol=None, qdelay=4, touch_out=0, sl1=4, sl2=2, sl0=0, first_delay=0, mx_at=11, P1=3, P2=3, fd2=0, pre2=0, opol=""):
    L = []
    p0pol = pol if p0pol is None else p0pol
    wpol = pol if wpol is None else wpol
    stamps = ALL_STAMPS if stamps == "all" else [s for s in stamps.split(",") if s]

    vm = []
    done = [0]
    pend = []
    cnt = [0]
    pacing = [False]

    def RAW(s):
        L.append("    " + s)

    def A(s):
        RAW(s)
        if pacing[0]:
            cnt[0] += 1
            if cnt[0] >= chunk and pend and not nopace[0]:
                issue_next()

    nopace = [False]

    def C(s):
        L.append("    ; " + s)

    def LBL(s):
        L.append(s + ":")

    def need(name):
        i = vm.index(name)
        if i >= done[0]:
            RAW(f"s_waitcnt vmcnt({len(vm) - 1 - i})")
            done[0] = i + 1

    def issue(name, text, window=True):
        if window and len(vm) - done[0] >= D:
            n = D - 1
            RAW(f"s_waitcnt vmcnt({n})")
            done[0] = len(vm) - n
        RAW(text)
        vm.append(name)
        cnt[0] = 0

    def issue_next():
        name, text = pend.pop(0)
        issue(name, text)

    stamp_idx = {}

    def STAMPX(tag):
        if tag in stamps:
            i = stamp_idx.setdefault(tag, len(stamp_idx))
            RAW(f"s_memrealtime s[{64 + 2 * i}:{65 + 2 * i}]")

    def dpp(op, d, s0, s1, ctrl, rm=0xF, bm=0xF):
        A(f"{op}_dpp v{d}, v{s0}, v{s1} {ctrl} row_mask:{rm:#x} bank_mask:{bm:#x}")

    steps = ["quad_perm:[1,0,3,2]", "quad_perm:[2,3,0,1]", "row_half_mirror", "row_mirror"]

    def row_reduce(op, regs, st=steps):
        for s in st:
            for r in regs:
                dpp(op, r, r, r, s)
            if len(regs) < 3:
                A(f"s_nop {2 - len(regs)}")

    def cross_reduce(op, r, t, swaps=("16", "32")):
        for sw in swaps:
            A(f"v_mov_b32 v{t}, v{r}")
            A("s_nop 1")
            A(f"v_permlane{sw}_swap_b32 v{t}, v{r}")
            A(f"{op} v{r}, v{t}, v{r}")

    def poll(tag, P, base, vaddr, spend, f0, f1, sleep, pre_issued):
        ld = lambda j: f"global_load_dwordx4 v[{base + 4 * j}:{base + 4 * j + 3}], v{vaddr}, s[30:31] {hpol}"
        A(f"s_mov_b64 exec, s[{spend}:{spend + 1}]")
        for j in range(pre_issued, P - 1):
            A(ld(j))
            if sleep:
                A(f"s_sleep {sleep}")
        if P == 1 and pre_issued:
            A(f"s_branch L_skip{tag}")
        LBL(f"L_poll{tag}")
        for j in range(P):
            A(ld((j + P - 1) % P))
            if P == 1 and pre_issued:
                LBL(f"L_skip{tag}")
            A(f"s_waitcnt vmcnt({P - 1})")
            A(f"v_cmp_eq_u32 vcc, s{sTA}, v{base + 4 * j + 1}")
            A(f"v_cmp_eq_u32 s[56:57], s{sTB}, v{base + 4 * j + 3}")
            A("s_and_b64 exec, vcc, s[56:57]")
            A(f"v_mov_b32 v{f0}, v{base + 4 * j}")
            A(f"v_mov_b32 v{f1}, v{base + 4 * j + 2}")
            A(f"s_andn2_b64 s[{spend}:{spend + 1}], s[{spend}:{spend + 1}], exec")
            A(f"s_cbranch_scc0 L_done{tag}")
            A(f"s_mov_b64 exec, s[{spend}:{spend + 1}]")
            if sleep:
                A(f"s_sleep {sleep}")
        A("s_sub_u32 s58, s58, 1")
        A(f"s_cbranch_scc0 L_poll{tag}")
        LBL(f"L_done{tag}")
        A("s_mov_b64 exec, -1")

    L.append(HEADER + f"; @launch grid=(256,1,1) block=(512,1,1) lds={LDS_BYTES}")
    L.append('.amdgcn_target "amdgcn-amd-amdhsa--gfx950"')
    L.append(".text")
    L.append(f".globl {NAME}_kernel")
    L.append(".p2align 8")
    L.append(f".type {NAME}_kernel,@function")
    L.append(f"{NAME}_kernel:")

    LANE = 1
    ME = [2, 3, 4, 5]
    Q = [6, 7, 8, 9]
    KOFF = list(range(32, 48))
    AT = list(range(48, 64))
    KR, VR = 64, 128
    X, XP, XO = 192, 196, 197
    WQA, WQB, WGA, WGB = 200, 204, 208, 212
    G0, G1 = 216, 220
    WO0, WO1, WD = 224, 228, 232
    AH, DPV, DY = 236, 240, 244
    vWO, vWD, vOG, vMLG, vG, vWT, vR = 248, 249, 250, 251, 252, 253, 254
    sH, sS, sW = 3, 4, 5
    sTA, sTB = 33, 34

    def kload(t):
        return (f"K{t}", f"global_load_dwordx4 v[{KR + 4 * t}:{KR + 4 * t + 3}], v{KOFF[t]}, s[10:11] {pol}")

    def vload(t):
        return (f"V{t}", f"global_load_dwordx4 v[{VR + 4 * t}:{VR + 4 * t + 3}], v{KOFF[t]}, s[12:13] {pol}")

    gtext = f"global_load_dwordx4 v[{G0}:{G0 + 3}], v{vG}, s[30:31] {hpol}"
    wl = [("WD", f"global_load_dwordx4 v[{WD}:{WD + 3}], v{vWD}, s[24:25] {wpol}"),
          ("WO0", f"global_load_dwordx4 v[{WO0}:{WO0 + 3}], v{vWO}, s[16:17] {wpol}"),
          ("WO1", f"global_load_dwordx4 v[{WO1}:{WO1 + 3}], v{vWO}, s[16:17] offset:2048 {wpol}")]

    STAMPX("entry")
    A("s_cmp_ge_u32 s2, 256")
    A("s_cbranch_scc1 L_end")
    A("s_load_dwordx16 s[8:23], s[0:1], 0")
    A("s_load_dwordx8 s[24:31], s[0:1], 64")
    if prio:
        A("s_setprio 3")
    A("v_lshrrev_b32 v10, 6, v0")
    A(f"v_and_b32 v{LANE}, 63, v0")
    A(f"s_lshr_b32 s{sH}, s2, 3")
    A(f"v_readfirstlane_b32 s{sW}, v10")
    A(f"s_and_b32 s{sS}, s2, 7")
    C("lane fields: v11 = g, v12 = i, v13 = b, v14 = e")
    A(f"v_lshrrev_b32 v11, 4, v{LANE}")
    A(f"v_and_b32 v12, 15, v{LANE}")
    A(f"v_bfe_u32 v13, v{LANE}, 3, 1")
    A(f"v_and_b32 v14, 7, v{LANE}")
    C("s = 4*ch + rb ; s6 = 128 rb + 16 w = first weight row of this wave")
    A(f"s_and_b32 s6, s{sS}, 3")
    A("s_lshl_b32 s6, s6, 7")
    A(f"s_lshl_b32 s7, s{sW}, 4")
    A("s_add_u32 s6, s6, s7")
    A(f"s_lshr_b32 s35, s{sS}, 2")
    A("v_lshl_add_u32 v15, v11, 2, s6")
    A("v_lshl_add_u32 v21, v13, 1, v15")
    A("v_xor_b32 v23, 1, v13")
    A("v_lshl_add_u32 v23, v23, 1, v15")
    A(f"v_lshlrev_b32 v16, 4, v{LANE}")
    A("v_lshlrev_b32 v17, 1, v21")
    C("wq offset: row*8192 + 256h + 128ch + 16e")
    A(f"s_lshl_b32 s43, s{sH}, 8")
    A("s_lshl_b32 s42, s35, 7")
    A("s_add_u32 s43, s43, s42")
    A("v_lshl_add_u32 v19, v14, 4, s43")
    A("v_lshl_add_u32 v19, v21, 13, v19")
    A("v_add_u32 v20, 0x2000, v19")
    C("gate/up offset")
    A(f"s_mul_i32 s44, s{sH}, 43")
    A("s_and_b32 s45, s44, 7")
    A("s_andn2_b32 s46, s44, 7")
    A("s_lshl_b32 s46, s46, 1")
    A("s_add_u32 s47, s45, 42")
    A("s_lshr_b32 s47, s47, 3")
    A("v_min_u32 v22, s47, v14")
    A("v_lshl_add_u32 v22, v22, 4, s46")
    A("s_movk_i32 s48, 2752")
    A("v_mad_u32_u24 v22, v23, s48, v22")
    C("K/V offsets")
    A(f"s_lshl_b32 s49, s{sH}, 23")
    A(f"s_lshl_b32 s50, s{sS}, 17")
    A("s_add_u32 s49, s49, s50")
    A(f"s_add_u32 s49, s49, {28672 * 256}")
    A(f"v_lshl_add_u32 v{KOFF[0]}, v0, 4, s49")

    def koffs(lo, hi):
        for t in range(lo, hi):
            if rot == 0:
                if t:
                    A(f"v_add_u32 v{KOFF[t]}, {t * 8192:#x}, v{KOFF[0]}")
            else:
                A(f"s_add_u32 s51, s50, {t}")
                A("s_and_b32 s51, s51, 15")
                A("s_lshl_b32 s51, s51, 13")
                A(f"v_add_u32 v{KOFF[t]}, s51, v28")
    if rot:
        A(f"v_mov_b32 v28, v{KOFF[0]}")
        A(f"s_mul_i32 s50, s{sH}, {rot}")
    koffs(0, 16)
    A("v_mov_b32 v24, 0")
    A("v_mov_b32 v25, 0")
    A("v_mov_b32 v26, 0")
    A("v_mov_b32 v27, 0")
    A(f"ds_write_b128 v24, v[24:27] offset:{CNT}")
    A("s_cmp_eq_u32 s35, 0")
    A("s_waitcnt lgkmcnt(0)")
    STAMPX("kernarg")
    issue("X", f"global_load_dwordx4 v[{X}:{X + 3}], v16, s[8:9]", False)
    issue("XP", f"global_load_dword v{XP}, v17, s[8:9]", False)
    A("s_cselect_b32 s20, s20, s22")
    A("s_cselect_b32 s21, s21, s23")
    issue("WQA", f"global_load_dwordx4 v[{WQA}:{WQA + 3}], v19, s[14:15] {p0pol}", False)
    issue("WQB", f"global_load_dwordx4 v[{WQB}:{WQB + 3}], v20, s[14:15] {p0pol}", False)
    issue("WGA", f"global_load_dwordx4 v[{WGA}:{WGA + 3}], v22, s[20:21] {p0pol}", False)
    issue("WGB", f"global_load_dwordx4 v[{WGB}:{WGB + 3}], v22, s[20:21] offset:2752 {p0pol}", False)
    A(f"s_load_dword s32, s[30:31], {W_OFF}")
    A("s_barrier")
    if prio:
        A("s_setprio 0")
    for t in range(k_pre):
        issue(*kload(t), window=False)
    C("lane masks")
    A("s_mov_b32 s36, 0xcccccccc")
    A("s_mov_b32 s37, 0xcccccccc")
    A("s_mov_b32 s38, 0xaaaaaaaa")
    A("s_mov_b32 s39, 0xaaaaaaaa")
    A("s_mov_b32 s40, 0x00ff00ff")
    A("s_mov_b32 s41, 0xff00ff00")
    A("s_mov_b32 s52, -1")
    A("s_mov_b32 s53, 0")
    A("s_mov_b32 s54, 0x01010101")
    A("s_mov_b32 s55, 0x01010101")
    A(f"v_and_b32 v24, 1, v{LANE}")
    A("v_lshlrev_b32 v24, 4, v24")
    A("v_mov_b32 v25, 0xffff")
    A("v_lshlrev_b32 v24, v24, v25")
    for r in range(4):
        m = (0x03030303 << (2 * r)) & 0xFFFFFFFF
        A(f"s_mov_b32 s56, {m:#x}")
        A(f"s_mov_b32 s57, {m:#x}")
        A(f"v_cndmask_b32 v{ME[r]}, 0, v24, s[56:57]")
    C("output byte offset 128 s + 4 h")
    A(f"s_lshl_b32 s42, s{sS}, 7")
    A(f"s_lshl_b32 s43, s{sH}, 2")
    A("s_add_u32 s42, s42, s43")
    C("wo offset: (128h + 16w + 8(g&1) + 4b + (g>>1))*1024 + 128s + 16e")
    A("v_and_b32 v24, 1, v11")
    A("v_lshlrev_b32 v24, 3, v24")
    A("v_lshl_add_u32 v24, v13, 2, v24")
    A("v_lshrrev_b32 v25, 1, v11")
    A("v_add_u32 v24, v24, v25")
    A(f"s_lshl_b32 s56, s{sH}, 7")
    A("s_add_u32 s56, s56, s7")
    A("v_add_u32 v24, s56, v24")
    A(f"s_lshl_b32 s57, s{sS}, 7")
    A("v_lshl_add_u32 v25, v14, 4, s57")
    A(f"v_lshl_add_u32 v{vWO}, v24, 10, v25")
    C("w_down: r = 8w + 2g + b ; row = 43h + min(r,42)")
    A("v_lshl_add_u32 v24, v11, 1, v13")
    A(f"s_lshl_b32 s56, s{sW}, 3")
    A(f"v_add_u32 v{vR}, s56, v24")
    A(f"v_min_u32 v24, 42, v{vR}")
    A("v_add_u32 v26, s44, v24")
    A(f"v_lshl_add_u32 v{vWD}, v26, 10, v25")
    A("v_add_u32 v24, s45, v24")
    A("v_lshlrev_b32 v31, 2, v24")
    C("gather offsets")
    A(f"v_lshrrev_b32 v24, 3, v{LANE}")
    A(f"s_lshl_b32 s56, s{sH}, 13")
    A(f"s_lshl_b32 s57, s{sW}, 7")
    A("s_add_u32 s56, s56, s57")
    A("v_lshlrev_b32 v25, 10, v24")
    A("v_lshl_add_u32 v25, v14, 4, v25")
    A("v_add_u32 v25, s56, v25")
    A(f"v_add_u32 v{vG}, {REC0:#x}, v25")
    A(f"v_add_u32 v{vOG}, {OREC:#x}, v25")
    A(f"s_lshl_b32 s56, s{sH}, 10")
    A(f"s_add_u32 s56, s56, {MLR:#x}")
    A(f"v_lshl_add_u32 v{vMLG}, v{LANE}, 4, s56")
    C("LDS write address of the phase-0 partials")
    A("v_lshrrev_b32 v24, 1, v11")
    A(f"s_lshl_b32 s56, s{sW}, 10")
    A("v_lshl_add_u32 v25, v24, 9, s56")
    A("v_and_b32 v26, 1, v11")
    A("v_lshl_add_u32 v25, v26, 4, v25")
    A("v_lshl_add_u32 v30, v14, 5, v25")
    A("v_xor_b32 v26, v24, v13")
    A("v_lshl_add_u32 v30, v26, 8, v30")
    C("LDS write address of the gathered q/gate/up value")
    A(f"v_bfe_u32 v24, v{LANE}, 4, 1")
    A("v_lshl_add_u32 v24, v14, 1, v24")
    A(f"v_lshrrev_b32 v25, 5, v{LANE}")
    A("v_lshl_add_u32 v24, v25, 6, v24")
    A(f"s_lshr_b32 s56, s{sW}, 2")
    A("s_lshl_b32 s56, s56, 6")
    A("s_add_u32 s56, s56, s7")
    A("v_add_lshl_u32 v29, v24, s56, 2")

    pend.extend(kload(t) for t in range(k_pre, 16))
    pend.insert(g_after + 1 - k_pre, ("G", gtext))
    pend.extend(vload(t) for t in range(16))
    for i, w in enumerate(wl):
        pend.insert([n for n, _ in pend].index(f"V{w_after}") + 1 + i, w)
    MLG = G0
    mltext = f"global_load_dwordx4 v[{MLG}:{MLG + 3}], v{vMLG}, s[30:31] {hpol}"
    pend.insert([n for n, _ in pend].index(f"V{ml_after}") + 1, ("MLG", mltext))
    C("layernorm")
    need("XP")
    STAMPX("x")
    for k in range(4):
        A(f"v_lshlrev_b32 v{10 + 2 * k}, 16, v{X + k}")
        A(f"v_and_b32 v{11 + 2 * k}, 0xffff0000, v{X + k}")
    A("v_add_f32 v18, v10, v11")
    A("v_add_f32 v19, v12, v13")
    A("v_add_f32 v20, v14, v15")
    A("v_add_f32 v21, v16, v17")
    A("v_add_f32 v18, v18, v19")
    A("v_add_f32 v20, v20, v21")
    A("v_add_f32 v18, v18, v20")
    A("s_nop 1")
    row_reduce("v_add_f32", [18])
    cross_reduce("v_add_f32", 18, 19)
    A("v_mul_f32 v18, 0x3b000000, v18")
    for k in range(8):
        A(f"v_sub_f32 v{10 + k}, v{10 + k}, v18")
    A("v_mul_f32 v19, v10, v10")
    A("v_mul_f32 v20, v11, v11")
    for k in range(2, 8, 2):
        A(f"v_fmac_f32 v19, v{10 + k}, v{10 + k}")
        A(f"v_fmac_f32 v20, v{11 + k}, v{11 + k}")
    A("v_add_f32 v19, v19, v20")
    A("s_nop 1")
    row_reduce("v_add_f32", [19])
    cross_reduce("v_add_f32", 19, 20)
    A("v_mul_f32 v19, 0x3b000000, v19")
    A("v_cvt_pk_bf16_f32 v20, v18, v19")
    A("v_lshlrev_b32 v18, 16, v20")
    A("v_and_b32 v19, 0xffff0000, v20")
    A("v_add_f32 v19, 0x3727c5ac, v19")
    A("v_cvt_pk_bf16_f32 v19, v19, v19")
    A("v_lshlrev_b32 v19, 16, v19")
    A("v_sqrt_f32 v19, v19")
    A(f"v_lshlrev_b32 v21, 16, v{XP}")
    A(f"v_and_b32 v22, 0xffff0000, v{XP}")
    A("v_cvt_pk_bf16_f32 v19, v19, v19")
    A("v_lshlrev_b32 v19, 16, v19")
    A("v_rcp_f32 v20, v19")
    A("v_sub_f32 v21, v21, v18")
    A("v_sub_f32 v22, v22, v18")
    A("v_cvt_pk_bf16_f32 v21, v21, v22")
    A("v_and_b32 v22, 0xffff0000, v21")
    A("v_lshlrev_b32 v21, 16, v21")
    A("v_mul_f32 v10, v21, v20")
    A("v_mul_f32 v11, v22, v20")
    A("v_fma_f32 v12, -v10, v19, v21")
    A("v_fma_f32 v13, -v11, v19, v22")
    A("v_fmac_f32 v10, v12, v20")
    A("v_fmac_f32 v11, v13, v20")
    A("v_cvt_pk_bf16_f32 v10, v10, v10")
    A("v_cvt_pk_bf16_f32 v11, v11, v11")
    for r in range(4):
        A(f"v_and_b32 v{20 + r}, v10, v{ME[r]}")
    for r in range(4):
        A(f"v_and_b32 v{24 + r}, v11, v{ME[r]}")
    need("WGB")
    STAMPX("p0w")
    DQ, DG = 48, 52
    A(f"v_mfma_f32_16x16x32_bf16 v[{DQ}:{DQ + 3}], v[20:23], v[{WQA}:{WQA + 3}], 0")
    A(f"v_mfma_f32_16x16x32_bf16 v[{DG}:{DG + 3}], v[20:23], v[{WGA}:{WGA + 3}], 0")
    A(f"v_mfma_f32_16x16x32_bf16 v[{DQ}:{DQ + 3}], v[24:27], v[{WQB}:{WQB + 3}], v[{DQ}:{DQ + 3}]")
    A(f"v_mfma_f32_16x16x32_bf16 v[{DG}:{DG + 3}], v[24:27], v[{WGB}:{WGB + 3}], v[{DG}:{DG + 3}]")
    nfill = 0
    while len(vm) - done[0] < D and pend[0][0] != "G":
        issue_next()
        nfill += 1
    A(f"s_nop {max(0, 7 - nfill)}")
    for r in range(4):
        A(f"v_cndmask_b32 v{DQ + r}, v{DG + r}, v{DQ + r}, s[40:41]")
    A(f"ds_write_b128 v30, v[{DQ}:{DQ + 3}] offset:{P0P}")
    A("v_mov_b32 v28, 0")
    A("v_mov_b32 v27, 1")
    A("s_mov_b64 exec, 1")
    A(f"ds_add_rtn_u32 v10, v28, v27 offset:{CNT}")
    A("s_mov_b64 exec, -1")
    A("s_waitcnt lgkmcnt(0)")
    A("v_readfirstlane_b32 s56, v10")
    A(f"s_add_u32 s{sTA}, s32, {C_TAG:#x}")
    A(f"s_xor_b32 s{sTB}, s{sTA}, {C_TAGB:#x}")
    STAMPX("bar1")
    A("s_cmp_lg_u32 s56, 7")
    A("s_cbranch_scc1 L_nopub0")
    C("the wave that arrived last sums the 16 partials and publishes 64 pieces")
    A(f"v_lshlrev_b32 v10, 3, v{LANE}")
    B0 = 192
    for p in range(16):
        A(f"ds_read_b64 v[{B0 + 2 * p}:{B0 + 2 * p + 1}], v10 offset:{P0P + p * 512}")
    A("s_lshl_b32 s56, s2, 10")
    A(f"s_add_u32 s56, s56, {REC0:#x}")
    A(f"v_lshl_add_u32 v11, v{LANE}, 4, s56")
    A(f"v_mov_b32 v13, s{sTA}")
    A(f"v_mov_b32 v15, s{sTB}")
    A("s_waitcnt lgkmcnt(0)")
    n = 16
    while n > 1:
        n //= 2
        for p in range(n):
            for c in range(2):
                dst = B0 + 2 * p + c if n > 1 else 12 + 2 * c
                A(f"v_add_f32 v{dst}, v{B0 + 2 * p + c}, v{B0 + 2 * (p + n) + c}")
    A(f"global_store_dwordx4 v11, v[12:15], s[30:31] {hpol}")
    C("(this store is one extra vm op in wave 0 only: every later counted wait only gets stricter for it)")
    LBL("L_nopub0")
    while pend[0][0] != "G":
        issue_next()
    issue_next()
    STAMPX("gissue")
    while len(vm) - 1 - vm.index("G") < D - 1:
        issue_next()
    A(f"s_mov_b32 s58, {SPIN_MAX}")
    need("G")
    LBL("L_chk0")
    A(f"v_cmp_ne_u32 vcc, s{sTA}, v{G0 + 1}")
    A(f"v_cmp_ne_u32 s[56:57], s{sTB}, v{G0 + 3}")
    A("s_or_b64 vcc, vcc, s[56:57]")
    A("s_cbranch_scc0 L_ok0")
    A("s_sub_u32 s58, s58, 1")
    A("s_cbranch_scc1 L_ok0")
    A(gtext)
    A("s_waitcnt vmcnt(0)")
    A("s_branch L_chk0")
    LBL("L_ok0")
    STAMPX("gok")
    C("sum over the 4 row blocks (lane bits 4,3); lane bit 5 = column half / matrix")
    A(f"v_permlane16_swap_b32 v{G0}, v{G0 + 2}")
    A(f"v_add_f32 v10, v{G0}, v{G0 + 2}")
    A(f"v_and_b32 v12, 15, v{LANE}")
    A("v_lshlrev_b32 v12, 5, v12")
    dpp("v_add_f32", 10, 10, 10, "row_ror:8")
    A(f"ds_write_b32 v29, v10 offset:{QF}")
    A("s_mov_b64 exec, 1")
    A(f"ds_add_u32 v28, v27 offset:{CNT + 4}")
    A("s_mov_b64 exec, -1")
    for _ in range(qdelay):
        issue_next()
    A(f"s_mov_b32 s58, {SPIN_MAX * 16}")
    LBL("L_qwait")
    A(f"ds_read_b32 v11, v28 offset:{CNT + 4}")
    A(f"ds_read_b128 v[16:19], v12 offset:{QF}")
    A(f"ds_read_b128 v[20:23], v12 offset:{QF + 16}")
    A(f"ds_read_b32 v24, v31 offset:{QF + 512}")
    A(f"ds_read_b32 v25, v31 offset:{QF + 768}")
    A("s_waitcnt lgkmcnt(0)")
    A("v_readfirstlane_b32 s56, v11")
    A("s_cmp_eq_u32 s56, 8")
    A("s_cbranch_scc1 L_qok")
    A("s_sub_u32 s58, s58, 1")
    A("s_cbranch_scc0 L_qwait")
    LBL("L_qok")
    STAMPX("qok")
    for k in range(4):
        A(f"v_cvt_pk_bf16_f32 v{Q[k]}, v{16 + 2 * k}, v{17 + 2 * k}")
    pacing[0] = True
    C("scores")
    for grp in range(4):
        while f"K{4 * grp + 3}" not in vm:
            issue_next()
        need(f"K{4 * grp + 3}")
        for j in range(4):
            for t in range(4 * grp, 4 * grp + 4):
                src2 = "0" if j == 0 else f"v{AT[t]}"
                A(f"v_dot2_f32_bf16 v{AT[t]}, v{KR + 4 * t + j}, v{Q[j]}, {src2}")
    C("GEGLU activation for this lane's hidden unit, interleaved with the transposing score reduction")
    A("v_cvt_pk_bf16_f32 v24, v24, v25")
    A("v_lshlrev_b32 v26, 16, v24")
    A("v_and_b32 v25, 0xffff0000, v24")
    A("v_mul_f32 v27, v26, v26")
    A("v_mul_f32 v27, v27, v26")
    A("v_mov_b32 v28, v26")
    A("v_fmac_f32 v28, 0x3d372713, v27")
    A("v_mul_f32 v28, 0xc0135761, v28")
    A("v_exp_f32 v28, v28")
    for t in range(8):
        dpp("v_add_f32", AT[t], AT[t], AT[t], "row_ror:8", bm=0x3)
        dpp("v_add_f32", AT[t], AT[t + 8], AT[t + 8], "row_ror:8", bm=0xC)
    A("v_add_f32 v28, 1.0, v28")
    A("v_rcp_f32 v28, v28")
    for t in range(4):
        dpp("v_add_f32", AT[t], AT[t], AT[t], "row_half_mirror", bm=0x5)
        dpp("v_add_f32", AT[t], AT[t + 4], AT[t + 4], "row_half_mirror", bm=0xA)
    A("v_mul_f32 v28, v26, v28")
    A("v_cvt_pk_bf16_f32 v28, v28, v28")
    for t in range(4):
        dpp("v_add_f32", AT[t], AT[t], AT[t], "quad_perm:[2,3,0,1]")
    A("v_lshlrev_b32 v28, 16, v28")
    A(f"v_cndmask_b32 v{AT[0]}, v{AT[0]}, v{AT[2]}, s[36:37]")
    A(f"v_cndmask_b32 v{AT[1]}, v{AT[1]}, v{AT[3]}, s[36:37]")
    A("v_mul_f32 v28, v28, v25")
    A(f"v_cmp_gt_u32 vcc, 43, v{vR}")
    dpp("v_add_f32", AT[0], AT[0], AT[0], "quad_perm:[1,0,3,2]")
    dpp("v_add_f32", AT[1], AT[1], AT[1], "quad_perm:[1,0,3,2]")
    A("v_cndmask_b32 v28, 0, v28, vcc")
    A(f"v_cndmask_b32 v10, v{AT[0]}, v{AT[1]}, s[38:39]")
    A("v_cvt_pk_bf16_f32 v28, v28, v28")
    A("v_cvt_pk_bf16_f32 v10, v10, v10")
    for r in range(4):
        A(f"v_and_b32 v{AH + r}, v28, v{ME[r]}")
    A("v_lshlrev_b32 v10, 16, v10")
    A("v_mul_f32 v10, 0x3db504f3, v10")
    A("v_cvt_pk_bf16_f32 v10, v10, v10")
    A("v_lshlrev_b32 v10, 16, v10")
    A("v_mov_b32 v14, v10")
    A(f"s_lshl_b32 s56, s2, 7")
    A(f"s_lshl_b32 s57, s{sW}, 4")
    row_reduce("v_max_f32", [14])
    cross_reduce("v_max_f32", 14, 12)
    A("s_add_u32 s56, s56, s57")
    A(f"s_add_u32 s56, s56, {MLR:#x}")
    A("v_mov_b32 v11, s56")
    A(f"v_mov_b32 v13, s{sTA}")
    A(f"v_mov_b32 v15, s{sTB}")
    A(f"s_lshl_b32 s56, s{sW}, 2")
    A("v_mov_b32 v17, s56")
    A("v_mov_b32 v30, 1")
    A("v_mov_b32 v31, 0")
    A("v_sub_f32 v10, v10, v14")
    A("v_mul_f32 v10, 0x3fb8aa3b, v10")
    A("v_exp_f32 v10, v10")
    A("s_nop 0")
    A("v_mov_b32 v12, v10")
    A("v_cvt_pk_bf16_f32 v10, v10, v10")
    A("s_nop 0")
    for t in range(16):
        if t < 4:
            dpp("v_add_f32", 12, 12, 12, steps[t])
        if t == 4:
            A("v_mov_b32 v16, v12")
        if t == 5:
            A("v_permlane16_swap_b32 v16, v12")
            A("v_add_f32 v12, v16, v12")
            A("v_mov_b32 v16, v12")
        if t == 6:
            A("v_permlane32_swap_b32 v16, v12")
            A("v_add_f32 v12, v16, v12")
        if t == 7:
            RAW("s_mov_b64 exec, 1")
            issue("STML", f"global_store_dwordx4 v11, v[12:15], s[30:31] {hpol}", window=False)
            RAW(f"ds_write_b32 v17, v14 offset:{MX}")
            RAW(f"ds_add_u32 v31, v30 offset:{CNT + 8}")
            RAW("s_mov_b64 exec, -1")
            STAMPX("stml")
        for r in range(4):
            dpp("v_and_b32", KR + 4 * t + r, 10, ME[r], f"row_newbcast:{t}")
    C("addresses for the tail")
    A(f"v_lshrrev_b32 v16, 4, v{LANE}")
    A(f"v_and_b32 v17, 15, v{LANE}")
    A(f"s_mul_i32 s56, s{sW}, {OPS}")
    A("v_lshl_add_u32 v18, v17, 5, s56")
    A("v_lshl_add_u32 v18, v16, 4, v18")
    A(f"v_and_b32 v17, 7, v{LANE}")
    A(f"v_lshrrev_b32 v19, 3, v{LANE}")
    A(f"s_lshl_b32 s56, s{sW}, 6")
    A("v_lshl_add_u32 v20, v19, 3, s56")
    A(f"v_mov_b32 v21, {OPS}")
    A("v_mad_u32_u24 v21, v17, v21, v20")
    A(f"v_mov_b32 v22, {YPS}")
    A("v_mad_u32_u24 v22, v17, v22, v20")
    A("s_lshl_b32 s56, s2, 10")
    A(f"s_lshl_b32 s57, s{sW}, 7")
    A("s_add_u32 s56, s56, s57")
    A(f"s_add_u32 s56, s56, {OREC:#x}")
    A("v_lshl_add_u32 v23, v19, 4, s56")
    A(f"s_lshl_b32 s56, s{sS}, 5")
    A(f"s_add_u32 s56, s56, s{sH}")
    A("s_lshl_b32 s56, s56, 9")
    A("s_add_u32 s56, s56, s57")
    A(f"s_add_u32 s56, s56, {YREC:#x}")
    A("v_lshl_add_u32 v24, v19, 4, s56")
    A("v_lshrrev_b32 v25, 1, v16")
    A(f"v_mul_u32_u24 v25, {YPS}, v25")
    A(f"s_mul_i32 s56, s{sW}, {2 * YPS}")
    A("v_add_u32 v25, s56, v25")
    A("v_and_b32 v26, 1, v16")
    A("v_lshl_add_u32 v25, v26, 4, v25")
    A("v_lshl_add_u32 v25, v17, 5, v25")
    A(f"v_and_b32 v26, 31, v{LANE}")
    A(f"s_lshl_b32 s56, s{sS}, 14")
    A(f"s_lshl_b32 s57, s{sH}, 4")
    A("s_add_u32 s56, s56, s57")
    A(f"s_add_u32 s56, s56, {YREC:#x}")
    A("v_lshl_add_u32 v26, v26, 9, s56")
    A("v_mov_b32 v27, s42")
    A("v_lshlrev_b32 v28, 5, v17")
    A(f"s_lshl_b32 s56, s{sS}, 3")
    A("s_mov_b64 s[60:61], 0xff")
    A("s_lshl_b64 s[60:61], s[60:61], s56")
    A("s_not_b64 s[62:63], s[60:61]")
    A(f"s_lshl_b64 s[50:51], 1, s{sH}")
    A("s_andn2_b64 s[50:51], s[52:53], s[50:51]")
    A(f"v_and_b32 v29, 15, v{LANE}")
    A(f"v_mul_u32_u24 v29, {YPS}, v29")
    A(f"s_lshl_b32 s56, s{sH}, 3")
    A("v_add_u32 v29, s56, v29")
    pacing[0] = False
    STAMPX("pvstart")
    if pre2:
        pend.insert(min(len(pend), pre2 - 1), ("PRE2", f"global_load_dwordx4 v[56:59], v26, s[30:31] {hpol}"))
    pend.append(("XO", f"global_load_dword v{XO}, v27, s[8:9]"))
    if touch_out:
        pend.append(("TO", f"global_load_dword v{XP}, v27, s[26:27]"))

    def mxblock():
        C("workgroup max from the 8 wave maxima; this wave's factor")
        A(f"s_mov_b32 s58, {SPIN_MAX * 16}")
        LBL("L_mxwait")
        A(f"ds_read_b32 v16, v31 offset:{CNT + 8}")
        A(f"ds_read_b128 v[48:51], v31 offset:{MX}")
        A(f"ds_read_b128 v[52:55], v31 offset:{MX + 16}")
        A("s_waitcnt lgkmcnt(0)")
        A("v_readfirstlane_b32 s56, v16")
        A("s_cmp_eq_u32 s56, 8")
        A("s_cbranch_scc1 L_mxok")
        A("s_sub_u32 s58, s58, 1")
        A("s_cbranch_scc0 L_mxwait")
        LBL("L_mxok")
        A("v_max3_f32 v48, v48, v49, v50")
        A("v_max3_f32 v51, v51, v52, v53")
        A("v_max3_f32 v48, v48, v54, v55")
        A("v_max_f32 v48, v48, v51")
        A("v_sub_f32 v10, v14, v48")
        A("v_mul_f32 v10, 0x3fb8aa3b, v10")
        A("v_exp_f32 v30, v10")
        STAMPX("mlok")

    for t in range(16):
        while f"V{t}" not in vm:
            issue_next()
        while pend and len(vm) - max(done[0], vm.index(f"V{t}")) < D:
            issue_next()
        if t == mx_at:
            mxblock()
        need(f"V{t}")
        c = "0" if t == 0 else f"v[{DPV}:{DPV + 3}]"
        A(f"v_mfma_f32_16x16x32_bf16 v[{DPV}:{DPV + 3}], v[{KR + 4 * t}:{KR + 4 * t + 3}], v[{VR + 4 * t}:{VR + 4 * t + 3}], {c}")
        if t == 14:
            while pend:
                issue(*pend.pop(0), window=False)
    assert not pend
    STAMPX("vland")
    A("s_mov_b64 exec, s[52:53]")
    A("s_nop 6")
    for r in range(4):
        A(f"v_mul_f32 v{DPV + r}, v30, v{DPV + r}")
    A(f"ds_write_b128 v18, v[{DPV}:{DPV + 3}] offset:{OP}")
    A("s_mov_b64 exec, -1")
    A("s_waitcnt lgkmcnt(0)")
    A("s_barrier")
    A(f"ds_read_b64 v[16:17], v21 offset:{OP}")
    A("s_waitcnt lgkmcnt(0)")
    dpp("v_add_f32", 14, 17, 17, steps[0])
    dpp("v_add_f32", 12, 16, 16, steps[0])
    A("s_nop 0")
    row_reduce("v_add_f32", [14, 12], steps[1:3])
    A("s_mov_b64 exec, s[54:55]")
    issue("STO", f"global_store_dwordx4 v23, v[12:15], s[30:31] {hpol}", window=False)
    OG = G1
    A("s_mov_b64 exec, s[62:63]")
    if first_delay:
        A(f"s_sleep {first_delay}")
    issue("OG", f"global_load_dwordx4 v[{KR}:{KR + 3}], v{vOG}, s[30:31] {hpol}", window=False)
    A("s_mov_b64 exec, -1")
    C("own slice: taken from registers, never re-read from memory")
    A("ds_bpermute_b32 v10, v28, v12")
    A("ds_bpermute_b32 v11, v28, v14")
    STAMPX("opub")
    C("w_down part of the output projection while the hand-off is in flight")
    need("WD")
    A(f"v_mfma_f32_16x16x32_bf16 v[{DY}:{DY + 3}], v[{AH}:{AH + 3}], v[{WD}:{WD + 3}], 0")
    A("s_mov_b64 exec, s[60:61]")
    A("s_waitcnt lgkmcnt(0)")
    A(f"v_mov_b32 v{OG}, v10")
    A(f"v_mov_b32 v{OG + 2}, v11")
    A("s_mov_b64 exec, -1")
    C("softmax weights of the 8 slices from the 64 per-wave records")
    A(f"s_mov_b32 s58, {SPIN_MAX}")
    need("MLG")
    LBL("L_chk1")
    A(f"v_cmp_ne_u32 vcc, s{sTA}, v{MLG + 1}")
    A(f"v_cmp_ne_u32 s[56:57], s{sTB}, v{MLG + 3}")
    A("s_or_b64 vcc, vcc, s[56:57]")
    A("s_cbranch_scc0 L_ok1")
    A("s_sub_u32 s58, s58, 1")
    A("s_cbranch_scc1 L_ok1")
    A(mltext)
    A("s_waitcnt vmcnt(0)")
    A("s_branch L_chk1")
    LBL("L_ok1")
    dpp("v_max_f32", 16, MLG + 2, MLG + 2, steps[0])
    A("s_nop 1")
    row_reduce("v_max_f32", [16], steps[1:3])
    dpp("v_max_f32", 10, 16, 16, "row_ror:8")
    cross_reduce("v_max_f32", 10, 11)
    A(f"v_sub_f32 v11, v{MLG + 2}, v10")
    A("v_sub_f32 v10, v16, v10")
    A("v_mul_f32 v11, 0x3fb8aa3b, v11")
    A("v_mul_f32 v10, 0x3fb8aa3b, v10")
    A("v_exp_f32 v11, v11")
    A("v_exp_f32 v10, v10")
    A(f"v_mul_f32 v11, v11, v{MLG}")
    A("s_nop 1")
    row_reduce("v_add_f32", [11])
    cross_reduce("v_add_f32", 11, 16)
    A("v_rcp_f32 v11, v11")
    A(f"s_mov_b32 s58, {SPIN_MAX}")
    A(f"v_mul_f32 v{vWT}, v10, v11")
    STAMPX("wts")
    poll("O", P1, KR, vOG, 62, OG, OG + 2, sl1, 1)
    STAMPX("ook")
    A(f"v_mul_f32 v10, v{vWT}, v{OG}")
    A(f"v_mul_f32 v11, v{vWT}, v{OG + 2}")
    A("s_nop 1")
    A("v_permlane32_swap_b32 v10, v11")
    A("v_add_f32 v10, v10, v11")
    cross_reduce("v_add_f32", 10, 11, swaps=("16",))
    A("s_nop 1")
    dpp("v_add_f32", 10, 10, 10, "row_ror:8")
    A("v_cvt_pk_bf16_f32 v10, v10, v10")
    A("s_nop 1")
    for k in range(2):
        for b4 in range(2):
            for b in range(2):
                p = 4 * b4 + 2 * b + k
                A(f"v_mov_b32_dpp v{16 + k}, v10 row_newbcast:{p} row_mask:{(0x5, 0xa)[b4]:#x} bank_mask:{(0x3, 0xc)[b]:#x}")
    for k in range(2):
        for r in range(4):
            A(f"v_and_b32 v{48 + 4 * k + r}, v{16 + k}, v{ME[r]}")
    A("s_nop 0")
    A(f"v_mfma_f32_16x16x32_bf16 v[{DY}:{DY + 3}], v[48:51], v[{WO0}:{WO0 + 3}], v[{DY}:{DY + 3}]")
    A(f"v_mfma_f32_16x16x32_bf16 v[{DY}:{DY + 3}], v[52:55], v[{WO1}:{WO1 + 3}], v[{DY}:{DY + 3}]")
    A("s_mov_b64 exec, s[40:41]")
    A("s_nop 6")
    A(f"ds_write_b128 v25, v[{DY}:{DY + 3}] offset:{YP}")
    A("s_mov_b64 exec, -1")
    A("s_waitcnt lgkmcnt(0)")
    A("s_barrier")
    A(f"s_cmp_ge_u32 s{sW}, 4")
    A("s_cbranch_scc1 L_final")
    A(f"ds_read_b64 v[16:17], v22 offset:{YP}")
    A(f"ds_read_b64 v[18:19], v22 offset:{YP + 8 * YPS}")
    A("s_waitcnt lgkmcnt(0)")
    A("v_add_f32 v14, v17, v19")
    A("v_add_f32 v12, v16, v18")
    A("s_nop 0")
    row_reduce("v_add_f32", [14, 12], steps[:3])
    A("s_mov_b64 exec, s[54:55]")
    A(f"global_store_dwordx4 v24, v[12:15], s[30:31] {hpol}")
    if stamps:
        A("s_mov_b64 exec, -1")
        STAMPX("end")
        A("s_branch L_stamps")
    else:
        A("s_endpgm")
    LBL("L_final")
    A(f"s_cmp_lg_u32 s{sW}, 4")
    if stamps:
        STAMPX("end")
        A("s_cbranch_scc1 L_stamps")
    else:
        A("s_cbranch_scc1 L_end")
    A(f"s_mov_b32 s58, {SPIN_MAX}")
    C("own workgroup's piece straight from LDS (lanes 32..47), zero elsewhere")
    A(f"ds_read_b64 v[20:21], v29 offset:{YP}")
    A("v_mov_b32 v16, 0")
    A("v_mov_b32 v18, 0")
    A("s_mov_b32 exec_lo, 0")
    A("s_mov_b32 exec_hi, 0xffff")
    A("s_waitcnt lgkmcnt(0)")
    A("v_mov_b32 v16, v20")
    A("v_mov_b32 v18, v21")
    if fd2:
        A(f"s_sleep {fd2}")
    poll("Y", P2, KR + 32, 26, 50, 16, 18, sl2, 0)
    A("s_nop 0")
    A("v_permlane32_swap_b32 v16, v18")
    A("v_add_f32 v16, v16, v18")
    A(f"v_lshlrev_b32 v10, 16, v{XO}")
    A(f"v_and_b32 v11, 0xffff0000, v{XO}")
    row_reduce("v_add_f32", [16])
    cross_reduce("v_add_f32", 16, 17, swaps=("16",))
    A("s_nop 0")
    A("v_readlane_b32 s56, v16, 32")
    A("v_add_f32 v10, v10, v16")
    A("s_nop 0")
    A("v_add_f32 v11, s56, v11")
    A("v_cvt_pk_bf16_f32 v10, v10, v11")
    A("s_mov_b64 exec, 1")
    A(f"global_store_dword v27, v10, s[26:27] {opol}")
    A("s_cmp_lg_u32 s2, 0")
    A("s_cbranch_scc1 L_nowbump")
    A(f"v_mov_b32 v12, {W_OFF}")
    A(f"global_store_dword v12, v13, s[30:31] {hpol}")
    LBL("L_nowbump")
    if stamps:
        A("s_mov_b64 exec, -1")
        STAMPX("end")
        LBL("L_stamps")
        ns = len(stamp_idx)
        nq = (ns + 1) // 2
        A("s_waitcnt lgkmcnt(0)")
        A("s_lshl_b32 s56, s2, 3")
        A(f"s_add_u32 s56, s56, s{sW}")
        A(f"s_mul_i32 s56, s56, {nq * 16}")
        A(f"s_add_u32 s56, s56, {STAMP:#x}")
        A("v_mov_b32 v10, s56")
        A("s_mov_b64 exec, 1")
        for q in range(nq):
            for j in range(4):
                k = 4 * q + j
                if k >= 2 * ns:
                    k -= 2
                A(f"v_mov_b32 v{12 + j}, s{64 + k}")
            A(f"global_store_dwordx4 v10, v[12:15], s[30:31] offset:{q * 16}")
            A("s_nop 2")
        print("stamps per wave:", nq * 2, list(stamp_idx), file=sys.stderr)
    LBL("L_end")
    A("s_endpgm")
    L.append('.section .rodata,"a"')
    L.append(".p2align 6")
    L.append(f".amdhsa_kernel {NAME}_kernel")
    L.append("  .amdhsa_next_free_vgpr 256")
    L.append("  .amdhsa_next_free_sgpr 102")
    L.append("  .amdhsa_accum_offset 256")
    L.append("  .amdhsa_group_segment_fixed_size 0")
    L.append("  .amdhsa_kernarg_size 96")
    L.append("  .amdhsa_user_sgpr_count 2")
    L.append("  .amdhsa_user_sgpr_kernarg_segment_ptr 1")
    L.append("  .amdhsa_system_sgpr_workgroup_id_x 1")
    L.append("  .amdhsa_float_denorm_mode_32 3")
    L.append(".end_amdhsa_kernel")
    return "\n".join(L) + "\n"


if __name__ == "__main__":
    out = sys.argv[1]
    kw = {}
    for a in sys.argv[2:]:
        k, v = a.split("=")
        try:
            v = int(v)
        except ValueError:
            pass
        kw[k] = v
    open(out, "w").write(gen(**kw))
```

```python
import sys
from gen import NAME, HEADER

W_OFF = 0
REC0 = 0x10000
MLR = 0x100000
OREC = 0x110000
YREC = 0x160000
STAMP = 512 << 20
P0P = 0
QF = 8192
CNT = 9216
MX = 9248
OP = 9472
OPS = 544
YP = OP + 8 * OPS
YPS = 288
LDS_BYTES = YP + 16 * YPS

C_TAG = 0x9E3779B9
C_TAGB = 0x5BD1E995
SPIN_MAX = 1 << 18
ALL_STAMPS = ["entry", "kernarg", "x", "p0w", "bar1", "gissue", "gok", "qok", "stml", "pvstart", "mlok", "vland", "opub", "wts", "ook", "end"]


def gen(pol="nt", stamps="", rot=0, D=5, g_after=11, ml_after=11, w_after=15, k_pre=2, prio=0, hpol="sc1", chunk=36, p0pol=None, wpol=None, qdelay=4, touch_out=0, sl1=4, sl2=2, sl0=0, first_delay=0, mx_at=11, P1=3, P2=3, fd2=0, pre2=0, opol="", DV=None, DL=None, last_n=8, prios="", boost=0, DW=None, pn=16, spread=0, ml_block=0, slm=4, tlb=0, pre1=-1, csx=0):
    L = []
    p0pol = pol if p0pol is None else p0pol
    wpol = pol if wpol is None else wpol
    stamps = ALL_STAMPS if stamps == "all" else [s for s in stamps.split(",") if s]

    vm = []
    done = [0]
    pend = []
    cnt = [0]
    pacing = [False]

    def RAW(s):
        L.append("    " + s)

    def A(s):
        RAW(s)
        if pacing[0]:
            cnt[0] += 1
            if cnt[0] >= chunk and pend and not nopace[0]:
                issue_next()

    nopace = [False]

    def C(s):
        L.append("    ; " + s)

    def LBL(s):
        L.append(s + ":")

    def need(name):
        i = vm.index(name)
        if i >= done[0]:
            RAW(f"s_waitcnt vmcnt({len(vm) - 1 - i})")
            done[0] = i + 1

    DV = D if DV is None else DV
    DL = DV if DL is None else DL
    priomap = dict(x.split(":") for x in prios.split(",") if x)

    def win(name):
        if name[0] == "K" or name == "G":
            return D
        if name[0] == "V" and int(name[1:]) < 16 - last_n:
            return DV
        if name[0] != "V" and name != "MLG" and DW is not None:
            return DW
        return DL

    def issue(name, text, window=True):
        d = win(name)
        if window and len(vm) - done[0] >= d:
            n = d - 1
            RAW(f"s_waitcnt vmcnt({n})")
            done[0] = len(vm) - n
        RAW(text)
        vm.append(name)
        cnt[0] = 0
        if name in priomap:
            RAW(f"s_setprio {priomap[name]}")

    def issue_next():
        name, text = pend.pop(0)
        issue(name, text)

    stamp_idx = {}

    def STAMPX(tag):
        if tag in stamps:
            i = stamp_idx.setdefault(tag, len(stamp_idx))
            RAW(f"s_memrealtime s[{64 + 2 * i}:{65 + 2 * i}]")

    def dpp(op, d, s0, s1, ctrl, rm=0xF, bm=0xF):
        A(f"{op}_dpp v{d}, v{s0}, v{s1} {ctrl} row_mask:{rm:#x} bank_mask:{bm:#x}")

    steps = ["quad_perm:[1,0,3,2]", "quad_perm:[2,3,0,1]", "row_half_mirror", "row_mirror"]

    def row_reduce(op, regs, st=steps):
        for s in st:
            for r in regs:
                dpp(op, r, r, r, s)
            if len(regs) < 3:
                A(f"s_nop {2 - len(regs)}")

    def cross_reduce(op, r, t, swaps=("16", "32")):
        for sw in swaps:
            A(f"v_mov_b32 v{t}, v{r}")
            A("s_nop 1")
            A(f"v_permlane{sw}_swap_b32 v{t}, v{r}")
            A(f"{op} v{r}, v{t}, v{r}")

    def poll(tag, P, base, vaddr, spend, f0, f1, sleep, pre_issued):
        ld = lambda j: f"global_load_dwordx4 v[{base + 4 * j}:{base + 4 * j + 3}], v{vaddr}, s[30:31] {hpol}"
        A(f"s_mov_b64 exec, s[{spend}:{spend + 1}]")
        for j in range(pre_issued, P - 1):
            A(ld(j))
            if sleep:
                A(f"s_sleep {sleep}")
        if P == 1 and pre_issued:
            A(f"s_branch L_skip{tag}")
        LBL(f"L_poll{tag}")
        for j in range(P):
            A(ld((j + P - 1) % P))
            if P == 1 and pre_issued:
                LBL(f"L_skip{tag}")
            A(f"s_waitcnt vmcnt({P - 1})")
            A(f"v_cmp_eq_u32 vcc, s{sTA}, v{base + 4 * j + 1}")
            A(f"v_cmp_eq_u32 s[56:57], s{sTB}, v{base + 4 * j + 3}")
            A("s_and_b64 exec, vcc, s[56:57]")
            A(f"v_mov_b32 v{f0}, v{base + 4 * j}")
            A(f"v_mov_b32 v{f1}, v{base + 4 * j + 2}")
            A(f"s_andn2_b64 s[{spend}:{spend + 1}], s[{spend}:{spend + 1}], exec")
            A(f"s_cbranch_scc0 L_done{tag}")
            A(f"s_mov_b64 exec, s[{spend}:{spend + 1}]")
            if sleep:
                A(f"s_sleep {sleep}")
        A("s_sub_u32 s58, s58, 1")
        A(f"s_cbranch_scc0 L_poll{tag}")
        LBL(f"L_done{tag}")
        A("s_mov_b64 exec, -1")

    L.append(HEADER + f"; @launch grid=(256,1,1) block=(512,1,1) lds={LDS_BYTES}")
    L.append('.amdgcn_target "amdgcn-amd-amdhsa--gfx950"')
    L.append(".text")
    L.append(f".globl {NAME}_kernel")
    L.append(".p2align 8")
    L.append(f".type {NAME}_kernel,@function")
    L.append(f"{NAME}_kernel:")

    LANE = 1
    ME = [2, 3, 4, 5]
    Q = [6, 7, 8, 9]
    KOFF = list(range(32, 48))
    AT = list(range(48, 64))
    KR, VR = 64, 128
    X, XP, XO = 192, 196, 197
    WQA, WQB, WGA, WGB = 200, 204, 208, 212
    G0, G1 = 216, 220
    WO0, WO1, WD = 224, 228, 232
    AH, DPV, DY = 236, 240, 244
    vWO, vWD, vOG, vMLG, vG, vWT, vR = 248, 249, 250, 251, 252, 253, 254
    sH, sS, sW = 3, 4, 5
    sTA, sTB = 33, 34

    def kload(t):
        return (f"K{t}", f"global_load_dwordx4 v[{KR + 4 * t}:{KR + 4 * t + 3}], v{KOFF[t]}, s[10:11] {pol}")

    def vload(t):
        return (f"V{t}", f"global_load_dwordx4 v[{VR + 4 * t}:{VR + 4 * t + 3}], v{KOFF[t]}, s[12:13] {pol}")

    gtext = f"global_load_dwordx4 v[{G0}:{G0 + 3}], v{vG}, s[30:31] {hpol}"
    wl = [("WD", f"global_load_dwordx4 v[{WD}:{WD + 3}], v{vWD}, s[24:25] {wpol}"),
          ("WO0", f"global_load_dwordx4 v[{WO0}:{WO0 + 3}], v{vWO}, s[16:17] {wpol}"),
          ("WO1", f"global_load_dwordx4 v[{WO1}:{WO1 + 3}], v{vWO}, s[16:17] offset:2048 {wpol}")]

    STAMPX("entry")
    A("s_cmp_ge_u32 s2, 256")
    A("s_cbranch_scc1 L_end")
    A("s_load_dwordx16 s[8:23], s[0:1], 0")
    A("s_load_dwordx8 s[24:31], s[0:1], 64")
    if prio or prios:
        A("s_setprio 3")
    A("v_lshrrev_b32 v10, 6, v0")
    A(f"v_and_b32 v{LANE}, 63, v0")
    A(f"s_lshr_b32 s{sH}, s2, 3")
    A(f"v_readfirstlane_b32 s{sW}, v10")
    A(f"s_and_b32 s{sS}, s2, 7")
    C("lane fields: v11 = g, v12 = i, v13 = b, v14 = e")
    A(f"v_lshrrev_b32 v11, 4, v{LANE}")
    A(f"v_and_b32 v12, 15, v{LANE}")
    A(f"v_bfe_u32 v13, v{LANE}, 3, 1")
    A(f"v_and_b32 v14, 7, v{LANE}")
    C("s = 4*ch + rb ; s6 = 128 rb + 16 w = first weight row of this wave")
    A(f"s_and_b32 s6, s{sS}, 3")
    A("s_lshl_b32 s6, s6, 7")
    A(f"s_lshl_b32 s7, s{sW}, 4")
    A("s_add_u32 s6, s6, s7")
    A(f"s_lshr_b32 s35, s{sS}, 2")
    A("v_lshl_add_u32 v15, v11, 2, s6")
    A("v_lshl_add_u32 v21, v13, 1, v15")
    A("v_xor_b32 v23, 1, v13")
    A("v_lshl_add_u32 v23, v23, 1, v15")
    A(f"v_lshlrev_b32 v16, 4, v{LANE}")
    A("v_lshlrev_b32 v17, 1, v21")
    C("wq offset: row*8192 + 256h + 128ch + 16e")
    A(f"s_lshl_b32 s43, s{sH}, 8")
    A("s_lshl_b32 s42, s35, 7")
    A("s_add_u32 s43, s43, s42")
    A("v_lshl_add_u32 v19, v14, 4, s43")
    A("v_lshl_add_u32 v19, v21, 13, v19")
    A("v_add_u32 v20, 0x2000, v19")
    C("gate/up offset")
    A(f"s_mul_i32 s44, s{sH}, 43")
    A("s_and_b32 s45, s44, 7")
    A("s_andn2_b32 s46, s44, 7")
    A("s_lshl_b32 s46, s46, 1")
    A("s_add_u32 s47, s45, 42")
    A("s_lshr_b32 s47, s47, 3")
    A("v_min_u32 v22, s47, v14")
    A("v_lshl_add_u32 v22, v22, 4, s46")
    A("s_movk_i32 s48, 2752")
    A("v_mad_u32_u24 v22, v23, s48, v22")
    C("K/V offsets")
    A(f"s_lshl_b32 s49, s{sH}, 23")
    A(f"s_mul_i32 s50, s{sS}, {pn * 8192}")
    A("s_add_u32 s49, s49, s50")
    A(f"s_add_u32 s49, s49, {28672 * 256}")
    A(f"v_lshl_add_u32 v{KOFF[0]}, v0, 4, s49")

    def koffs(lo, hi):
        for t in range(lo, hi):
            if rot == 0:
                if t:
                    A(f"v_add_u32 v{KOFF[t]}, {(t // pn) * 8 * pn * 8192 + (t % pn) * 8192:#x}, v{KOFF[0]}")
            else:
                A(f"s_add_u32 s51, s50, {t}")
                A("s_and_b32 s51, s51, 15")
                A("s_lshl_b32 s51, s51, 13")
                A(f"v_add_u32 v{KOFF[t]}, s51, v28")
    if rot:
        A(f"v_mov_b32 v28, v{KOFF[0]}")
        A(f"s_mul_i32 s50, s{sH}, {rot}")
    koffs(0, 16)
    A("v_mov_b32 v24, 0")
    A("v_mov_b32 v25, 0")
    A("v_mov_b32 v26, 0")
    A("v_mov_b32 v27, 0")
    A(f"ds_write_b128 v24, v[24:27] offset:{CNT}")
    A("s_cmp_eq_u32 s35, 0")
    A("s_waitcnt lgkmcnt(0)")
    STAMPX("kernarg")
    issue("X", f"global_load_dwordx4 v[{X}:{X + 3}], v16, s[8:9]", False)
    issue("XP", f"global_load_dword v{XP}, v17, s[8:9]", False)
    A("s_cselect_b32 s20, s20, s22")
    A("s_cselect_b32 s21, s21, s23")
    issue("WQA", f"global_load_dwordx4 v[{WQA}:{WQA + 3}], v19, s[14:15] {p0pol}", False)
    issue("WQB", f"global_load_dwordx4 v[{WQB}:{WQB + 3}], v20, s[14:15] {p0pol}", False)
    issue("WGA", f"global_load_dwordx4 v[{WGA}:{WGA + 3}], v22, s[20:21] {p0pol}", False)
    issue("WGB", f"global_load_dwordx4 v[{WGB}:{WGB + 3}], v22, s[20:21] offset:2752 {p0pol}", False)
    A(f"s_load_dword s32, s[30:31], {W_OFF}")
    if tlb:
        C("touch the pages used later (address translation is then warm): wave 0,5.. V, 1 wo, 2 w_down, 3 ws, 4 out")
        A("s_mov_b64 s[56:57], s[12:13]")
        A("s_mov_b32 s58, s49")
        A(f"s_lshl_b32 s59, s{sH}, 17")
        A(f"s_cmp_eq_u32 s{sW}, 1")
        A("s_cselect_b64 s[56:57], s[16:17], s[56:57]")
        A("s_cselect_b32 s58, s59, s58")
        A("s_lshl_b32 s59, s44, 10")
        A(f"s_cmp_eq_u32 s{sW}, 2")
        A("s_cselect_b64 s[56:57], s[24:25], s[56:57]")
        A("s_cselect_b32 s58, s59, s58")
        A(f"s_bfe_u32 s59, s{sH}, 0x10003")
        A("s_lshl_b32 s59, s59, 23")
        A(f"s_add_u32 s59, s59, {0x7000 if spread else 0x8000}") if spread else A("s_mov_b32 s59, 0x8000")
        A(f"s_cmp_eq_u32 s{sW}, 3")
        A("s_cselect_b64 s[56:57], s[30:31], s[56:57]")
        A("s_cselect_b32 s58, s59, s58")
        A(f"s_cmp_eq_u32 s{sW}, 4")
        A("s_cselect_b64 s[56:57], s[26:27], s[56:57]")
        A("s_cselect_b32 s58, 0, s58")
        A("v_mov_b32 v24, s58")
        issue("TLB", f"global_load_dword v255, v24, s[56:57] {pol}", False)
    A("s_barrier")
    if prio:
        A("s_setprio 0")
    for t in range(k_pre):
        issue(*kload(t), window=False)
    C("lane masks")
    A("s_mov_b32 s36, 0xcccccccc")
    A("s_mov_b32 s37, 0xcccccccc")
    A("s_mov_b32 s38, 0xaaaaaaaa")
    A("s_mov_b32 s39, 0xaaaaaaaa")
    A("s_mov_b32 s40, 0x00ff00ff")
    A("s_mov_b32 s41, 0xff00ff00")
    A("s_mov_b32 s52, -1")
    A("s_mov_b32 s53, 0")
    A("s_mov_b32 s54, 0x01010101")
    A("s_mov_b32 s55, 0x01010101")
    A(f"v_and_b32 v24, 1, v{LANE}")
    A("v_lshlrev_b32 v24, 4, v24")
    A("v_mov_b32 v25, 0xffff")
    A("v_lshlrev_b32 v24, v24, v25")
    for r in range(4):
        m = (0x03030303 << (2 * r)) & 0xFFFFFFFF
        A(f"s_mov_b32 s56, {m:#x}")
        A(f"s_mov_b32 s57, {m:#x}")
        A(f"v_cndmask_b32 v{ME[r]}, 0, v24, s[56:57]")
    C("output byte offset 128 cs + 4 h")
    A(f"s_xor_b32 s95, s{sS}, {csx}")
    A("s_lshl_b32 s42, s95, 7")
    A(f"s_lshl_b32 s43, s{sH}, 2")
    A("s_add_u32 s42, s42, s43")
    C("wo offset: (128h + 16w + 8(g&1) + 4b + (g>>1))*1024 + 128s + 16e")
    A("v_and_b32 v24, 1, v11")
    A("v_lshlrev_b32 v24, 3, v24")
    A("v_lshl_add_u32 v24, v13, 2, v24")
    A("v_lshrrev_b32 v25, 1, v11")
    A("v_add_u32 v24, v24, v25")
    A(f"s_lshl_b32 s56, s{sH}, 7")
    A("s_add_u32 s56, s56, s7")
    A("v_add_u32 v24, s56, v24")
    A(f"s_lshl_b32 s57, s{sS}, 7")
    A("v_lshl_add_u32 v25, v14, 4, s57")
    A(f"v_lshl_add_u32 v{vWO}, v24, 10, v25")
    C("w_down: r = 8w + 2g + b ; row = 43h + min(r,42)")
    A("v_lshl_add_u32 v24, v11, 1, v13")
    A(f"s_lshl_b32 s56, s{sW}, 3")
    A(f"v_add_u32 v{vR}, s56, v24")
    A(f"v_min_u32 v24, 42, v{vR}")
    A("v_add_u32 v26, s44, v24")
    A(f"v_lshl_add_u32 v{vWD}, v26, 10, v25")
    A("v_add_u32 v24, s45, v24")
    A("v_lshlrev_b32 v31, 2, v24")
    C("hand-off record bases: s96 rec0(h), s97 orec(h), s98 ml(h), s99 yrec(cs)")
    if spread == 2:
        A(f"s_and_b32 s56, s{sH}, 7")
        A("s_lshl_b32 s56, s56, 17")
        A(f"s_lshr_b32 s57, s{sH}, 3")
        A("s_mul_i32 s57, s57, 0x5000")
        A("s_add_u32 s56, s56, s57")
        A("s_add_u32 s96, s56, 0x1000")
        A("s_add_u32 s97, s56, 0x3000")
        A("s_add_u32 s98, s56, 0x5000")
        A(f"s_lshl_b32 s56, s{sS}, 17")
        A("s_add_u32 s99, s56, 0x18000")
    elif spread == 3:
        A(f"s_lshl_b32 s56, s{sH}, 15")
        A("s_add_u32 s96, s56, 0x1000")
        A("s_add_u32 s97, s56, 0x3000")
        A("s_add_u32 s98, s56, 0x5000")
        A(f"s_lshl_b32 s56, s{sS}, 14")
        A(f"s_add_u32 s99, s56, {YREC:#x}")
    elif spread:
        A(f"s_and_b32 s56, s{sH}, 7")
        A("s_lshl_b32 s56, s56, 17")
        A(f"s_bfe_u32 s57, s{sH}, 0x10003")
        A("s_lshl_b32 s57, s57, 23")
        A("s_add_u32 s56, s56, s57")
        A(f"s_lshr_b32 s57, s{sH}, 4")
        A("s_lshl_b32 s57, s57, 15")
        A("s_add_u32 s56, s56, s57")
        A("s_add_u32 s96, s56, 0x1000")
        A("s_add_u32 s97, s56, 0x3000")
        A("s_add_u32 s98, s56, 0x5000")
        A(f"s_lshl_b32 s56, s{sS}, 17")
        A("s_add_u32 s99, s56, 0x10000")
    else:
        A(f"s_lshl_b32 s56, s{sH}, 13")
        A(f"s_add_u32 s96, s56, {REC0:#x}")
        A(f"s_add_u32 s97, s56, {OREC:#x}")
        A(f"s_lshl_b32 s56, s{sH}, 10")
        A(f"s_add_u32 s98, s56, {MLR:#x}")
        A(f"s_lshl_b32 s56, s{sS}, 14")
        A(f"s_add_u32 s99, s56, {YREC:#x}")
    C("gather offsets")
    A(f"v_lshrrev_b32 v24, 3, v{LANE}")
    A(f"s_lshl_b32 s57, s{sW}, 7")
    A("v_lshlrev_b32 v25, 10, v24")
    A("v_lshl_add_u32 v25, v14, 4, v25")
    A("v_add_u32 v25, s57, v25")
    A(f"v_add_u32 v{vG}, s96, v25")
    A(f"v_add_u32 v{vOG}, s97, v25")
    A(f"v_lshl_add_u32 v{vMLG}, v{LANE}, 4, s98")
    C("LDS write address of the phase-0 partials")
    A("v_lshrrev_b32 v24, 1, v11")
    A(f"s_lshl_b32 s56, s{sW}, 10")
    A("v_lshl_add_u32 v25, v24, 9, s56")
    A("v_and_b32 v26, 1, v11")
    A("v_lshl_add_u32 v25, v26, 4, v25")
    A("v_lshl_add_u32 v30, v14, 5, v25")
    A("v_xor_b32 v26, v24, v13")
    A("v_lshl_add_u32 v30, v26, 8, v30")
    C("LDS write address of the gathered q/gate/up value")
    A(f"v_bfe_u32 v24, v{LANE}, 4, 1")
    A("v_lshl_add_u32 v24, v14, 1, v24")
    A(f"v_lshrrev_b32 v25, 5, v{LANE}")
    A("v_lshl_add_u32 v24, v25, 6, v24")
    A(f"s_lshr_b32 s56, s{sW}, 2")
    A("s_lshl_b32 s56, s56, 6")
    A("s_add_u32 s56, s56, s7")
    A("v_add_lshl_u32 v29, v24, s56, 2")

    pend.extend(kload(t) for t in range(k_pre, 16))
    pend.insert(g_after + 1 - k_pre, ("G", gtext))
    pend.extend(vload(t) for t in range(16))
    for i, w in enumerate(wl):
        pend.insert([n for n, _ in pend].index(f"V{w_after}") + 1 + i, w)
    MLG = G0
    mltext = f"global_load_dwordx4 v[{MLG}:{MLG + 3}], v{vMLG}, s[30:31] {hpol}"
    pend.insert([n for n, _ in pend].index(f"V{ml_after}") + 1, ("MLG", mltext))
    C("layernorm")
    need("XP")
    STAMPX("x")
    for k in range(4):
        A(f"v_lshlrev_b32 v{10 + 2 * k}, 16, v{X + k}")
        A(f"v_and_b32 v{11 + 2 * k}, 0xffff0000, v{X + k}")
    A("v_add_f32 v18, v10, v11")
    A("v_add_f32 v19, v12, v13")
    A("v_add_f32 v20, v14, v15")
    A("v_add_f32 v21, v16, v17")
    A("v_add_f32 v18, v18, v19")
    A("v_add_f32 v20, v20, v21")
    A("v_add_f32 v18, v18, v20")
    A("s_nop 1")
    row_reduce("v_add_f32", [18])
    cross_reduce("v_add_f32", 18, 19)
    A("v_mul_f32 v18, 0x3b000000, v18")
    for k in range(8):
        A(f"v_sub_f32 v{10 + k}, v{10 + k}, v18")
    A("v_mul_f32 v19, v10, v10")
    A("v_mul_f32 v20, v11, v11")
    for k in range(2, 8, 2):
        A(f"v_fmac_f32 v19, v{10 + k}, v{10 + k}")
        A(f"v_fmac_f32 v20, v{11 + k}, v{11 + k}")
    A("v_add_f32 v19, v19, v20")
    A("s_nop 1")
    row_reduce("v_add_f32", [19])
    cross_reduce("v_add_f32", 19, 20)
    A("v_mul_f32 v19, 0x3b000000, v19")
    A("v_cvt_pk_bf16_f32 v20, v18, v19")
    A("v_lshlrev_b32 v18, 16, v20")
    A("v_and_b32 v19, 0xffff0000, v20")
    A("v_add_f32 v19, 0x3727c5ac, v19")
    A("v_cvt_pk_bf16_f32 v19, v19, v19")
    A("v_lshlrev_b32 v19, 16, v19")
    A("v_sqrt_f32 v19, v19")
    A(f"v_lshlrev_b32 v21, 16, v{XP}")
    A(f"v_and_b32 v22, 0xffff0000, v{XP}")
    A("v_cvt_pk_bf16_f32 v19, v19, v19")
    A("v_lshlrev_b32 v19, 16, v19")
    A("v_rcp_f32 v20, v19")
    A("v_sub_f32 v21, v21, v18")
    A("v_sub_f32 v22, v22, v18")
    A("v_cvt_pk_bf16_f32 v21, v21, v22")
    A("v_and_b32 v22, 0xffff0000, v21")
    A("v_lshlrev_b32 v21, 16, v21")
    A("v_mul_f32 v10, v21, v20")
    A("v_mul_f32 v11, v22, v20")
    A("v_fma_f32 v12, -v10, v19, v21")
    A("v_fma_f32 v13, -v11, v19, v22")
    A("v_fmac_f32 v10, v12, v20")
    A("v_fmac_f32 v11, v13, v20")
    A("v_cvt_pk_bf16_f32 v10, v10, v10")
    A("v_cvt_pk_bf16_f32 v11, v11, v11")
    for r in range(4):
        A(f"v_and_b32 v{20 + r}, v10, v{ME[r]}")
    for r in range(4):
        A(f"v_and_b32 v{24 + r}, v11, v{ME[r]}")
    need("WGB")
    STAMPX("p0w")
    DQ, DG = 48, 52
    A(f"v_mfma_f32_16x16x32_bf16 v[{DQ}:{DQ + 3}], v[20:23], v[{WQA}:{WQA + 3}], 0")
    A(f"v_mfma_f32_16x16x32_bf16 v[{DG}:{DG + 3}], v[20:23], v[{WGA}:{WGA + 3}], 0")
    A(f"v_mfma_f32_16x16x32_bf16 v[{DQ}:{DQ + 3}], v[24:27], v[{WQB}:{WQB + 3}], v[{DQ}:{DQ + 3}]")
    A(f"v_mfma_f32_16x16x32_bf16 v[{DG}:{DG + 3}], v[24:27], v[{WGB}:{WGB + 3}], v[{DG}:{DG + 3}]")
    nfill = 0
    while len(vm) - done[0] < D and pend[0][0] != "G":
        issue_next()
        nfill += 1
    A(f"s_nop {max(0, 7 - nfill)}")
    for r in range(4):
        A(f"v_cndmask_b32 v{DQ + r}, v{DG + r}, v{DQ + r}, s[40:41]")
    A(f"ds_write_b128 v30, v[{DQ}:{DQ + 3}] offset:{P0P}")
    A("v_mov_b32 v28, 0")
    A("v_mov_b32 v27, 1")
    A("s_mov_b64 exec, 1")
    A(f"ds_add_rtn_u32 v10, v28, v27 offset:{CNT}")
    A("s_mov_b64 exec, -1")
    A("s_waitcnt lgkmcnt(0)")
    A("v_readfirstlane_b32 s56, v10")
    A(f"s_add_u32 s{sTA}, s32, {C_TAG:#x}")
    A(f"s_xor_b32 s{sTB}, s{sTA}, {C_TAGB:#x}")
    STAMPX("bar1")
    A("s_cmp_lg_u32 s56, 7")
    A("s_cbranch_scc1 L_nopub0")
    C("the wave that arrived last sums the 16 partials and publishes 64 pieces")
    for name, text in pend[:boost]:
        RAW(text)
    A(f"v_lshlrev_b32 v10, 3, v{LANE}")
    B0 = 192
    for p in range(16):
        A(f"ds_read_b64 v[{B0 + 2 * p}:{B0 + 2 * p + 1}], v10 offset:{P0P + p * 512}")
    A(f"s_lshl_b32 s56, s{sS}, 10")
    A("s_add_u32 s56, s56, s96")
    A(f"v_lshl_add_u32 v11, v{LANE}, 4, s56")
    A(f"v_mov_b32 v13, s{sTA}")
    A(f"v_mov_b32 v15, s{sTB}")
    A("s_waitcnt lgkmcnt(0)")
    n = 16
    while n > 1:
        n //= 2
        for p in range(n):
            for c in range(2):
                dst = B0 + 2 * p + c if n > 1 else 12 + 2 * c
                A(f"v_add_f32 v{dst}, v{B0 + 2 * p + c}, v{B0 + 2 * (p + n) + c}")
    A(f"global_store_dwordx4 v11, v[12:15], s[30:31] {hpol}")
    C("(this store is one extra vm op in wave 0 only: every later counted wait only gets stricter for it)")
    if boost:
        A("s_branch L_join0")
    LBL("L_nopub0")
    if boost:
        d0 = done[0]
        for _ in range(boost):
            issue_next()
        done[0] = d0
        LBL("L_join0")
    while pend[0][0] != "G":
        issue_next()
    issue_next()
    STAMPX("gissue")
    while len(vm) - 1 - vm.index("G") < D - 1:
        issue_next()
    A(f"s_mov_b32 s58, {SPIN_MAX}")
    need("G")
    LBL("L_chk0")
    A(f"v_cmp_ne_u32 vcc, s{sTA}, v{G0 + 1}")
    A(f"v_cmp_ne_u32 s[56:57], s{sTB}, v{G0 + 3}")
    A("s_or_b64 vcc, vcc, s[56:57]")
    A("s_cbranch_scc0 L_ok0")
    A("s_sub_u32 s58, s58, 1")
    A("s_cbranch_scc1 L_ok0")
    A(gtext)
    A("s_waitcnt vmcnt(0)")
    A("s_branch L_chk0")
    LBL("L_ok0")
    STAMPX("gok")
    C("sum over the 4 row blocks (lane bits 4,3); lane bit 5 = column half / matrix")
    A(f"v_permlane16_swap_b32 v{G0}, v{G0 + 2}")
    A(f"v_add_f32 v10, v{G0}, v{G0 + 2}")
    A(f"v_and_b32 v12, 15, v{LANE}")
    A("v_lshlrev_b32 v12, 5, v12")
    dpp("v_add_f32", 10, 10, 10, "row_ror:8")
    A(f"ds_write_b32 v29, v10 offset:{QF}")
    A("s_mov_b64 exec, 1")
    A(f"ds_add_u32 v28, v27 offset:{CNT + 4}")
    A("s_mov_b64 exec, -1")
    for _ in range(qdelay):
        issue_next()
    A(f"s_mov_b32 s58, {SPIN_MAX * 16}")
    LBL("L_qwait")
    A(f"ds_read_b32 v11, v28 offset:{CNT + 4}")
    A(f"ds_read_b128 v[16:19], v12 offset:{QF}")
    A(f"ds_read_b128 v[20:23], v12 offset:{QF + 16}")
    A(f"ds_read_b32 v24, v31 offset:{QF + 512}")
    A(f"ds_read_b32 v25, v31 offset:{QF + 768}")
    A("s_waitcnt lgkmcnt(0)")
    A("v_readfirstlane_b32 s56, v11")
    A("s_cmp_eq_u32 s56, 8")
    A("s_cbranch_scc1 L_qok")
    A("s_sub_u32 s58, s58, 1")
    A("s_cbranch_scc0 L_qwait")
    LBL("L_qok")
    STAMPX("qok")
    for k in range(4):
        A(f"v_cvt_pk_bf16_f32 v{Q[k]}, v{16 + 2 * k}, v{17 + 2 * k}")
    pacing[0] = True
    C("scores")
    for grp in range(4):
        while f"K{4 * grp + 3}" not in vm:
            issue_next()
        need(f"K{4 * grp + 3}")
        for j in range(4):
            for t in range(4 * grp, 4 * grp + 4):
                src2 = "0" if j == 0 else f"v{AT[t]}"
                A(f"v_dot2_f32_bf16 v{AT[t]}, v{KR + 4 * t + j}, v{Q[j]}, {src2}")
    C("GEGLU activation for this lane's hidden unit, interleaved with the transposing score reduction")
    A("v_cvt_pk_bf16_f32 v24, v24, v25")
    A("v_lshlrev_b32 v26, 16, v24")
    A("v_and_b32 v25, 0xffff0000, v24")
    A("v_mul_f32 v27, v26, v26")
    A("v_mul_f32 v27, v27, v26")
    A("v_mov_b32 v28, v26")
    A("v_fmac_f32 v28, 0x3d372713, v27")
    A("v_mul_f32 v28, 0xc0135761, v28")
    A("v_exp_f32 v28, v28")
    for t in range(8):
        dpp("v_add_f32", AT[t], AT[t], AT[t], "row_ror:8", bm=0x3)
        dpp("v_add_f32", AT[t], AT[t + 8], AT[t + 8], "row_ror:8", bm=0xC)
    A("v_add_f32 v28, 1.0, v28")
    A("v_rcp_f32 v28, v28")
    for t in range(4):
        dpp("v_add_f32", AT[t], AT[t], AT[t], "row_half_mirror", bm=0x5)
        dpp("v_add_f32", AT[t], AT[t + 4], AT[t + 4], "row_half_mirror", bm=0xA)
    A("v_mul_f32 v28, v26, v28")
    A("v_cvt_pk_bf16_f32 v28, v28, v28")
    for t in range(4):
        dpp("v_add_f32", AT[t], AT[t], AT[t], "quad_perm:[2,3,0,1]")
    A("v_lshlrev_b32 v28, 16, v28")
    A(f"v_cndmask_b32 v{AT[0]}, v{AT[0]}, v{AT[2]}, s[36:37]")
    A(f"v_cndmask_b32 v{AT[1]}, v{AT[1]}, v{AT[3]}, s[36:37]")
    A("v_mul_f32 v28, v28, v25")
    A(f"v_cmp_gt_u32 vcc, 43, v{vR}")
    dpp("v_add_f32", AT[0], AT[0], AT[0], "quad_perm:[1,0,3,2]")
    dpp("v_add_f32", AT[1], AT[1], AT[1], "quad_perm:[1,0,3,2]")
    A("v_cndmask_b32 v28, 0, v28, vcc")
    A(f"v_cndmask_b32 v10, v{AT[0]}, v{AT[1]}, s[38:39]")
    A("v_cvt_pk_bf16_f32 v28, v28, v28")
    A("v_cvt_pk_bf16_f32 v10, v10, v10")
    for r in range(4):
        A(f"v_and_b32 v{AH + r}, v28, v{ME[r]}")
    A("v_lshlrev_b32 v10, 16, v10")
    A("v_mul_f32 v10, 0x3db504f3, v10")
    A("v_cvt_pk_bf16_f32 v10, v10, v10")
    A("v_lshlrev_b32 v10, 16, v10")
    A("v_mov_b32 v14, v10")
    A(f"s_lshl_b32 s56, s{sS}, 7")
    A(f"s_lshl_b32 s57, s{sW}, 4")
    row_reduce("v_max_f32", [14])
    cross_reduce("v_max_f32", 14, 12)
    A("s_add_u32 s56, s56, s57")
    A("s_add_u32 s56, s56, s98")
    A("v_mov_b32 v11, s56")
    A(f"v_mov_b32 v13, s{sTA}")
    A(f"v_mov_b32 v15, s{sTB}")
    A(f"s_lshl_b32 s56, s{sW}, 2")
    A("v_mov_b32 v17, s56")
    A("v_mov_b32 v30, 1")
    A("v_mov_b32 v31, 0")
    A("v_sub_f32 v10, v10, v14")
    A("v_mul_f32 v10, 0x3fb8aa3b, v10")
    A("v_exp_f32 v10, v10")
    A("s_nop 0")
    A("v_mov_b32 v12, v10")
    A("v_cvt_pk_bf16_f32 v10, v10, v10")
    A("s_nop 0")
    for t in range(16):
        if t < 4:
            dpp("v_add_f32", 12, 12, 12, steps[t])
        if t == 4:
            A("v_mov_b32 v16, v12")
        if t == 5:
            A("v_permlane16_swap_b32 v16, v12")
            A("v_add_f32 v12, v16, v12")
            A("v_mov_b32 v16, v12")
        if t == 6:
            A("v_permlane32_swap_b32 v16, v12")
            A("v_add_f32 v12, v16, v12")
        if t == 7:
            RAW("s_mov_b64 exec, 1")
            issue("STML", f"global_store_dwordx4 v11, v[12:15], s[30:31] {hpol}", window=False)
            RAW(f"ds_write_b32 v17, v14 offset:{MX}")
            RAW(f"ds_add_u32 v31, v30 offset:{CNT + 8}")
            RAW("s_mov_b64 exec, -1")
            STAMPX("stml")
        for r in range(4):
            dpp("v_and_b32", KR + 4 * t + r, 10, ME[r], f"row_newbcast:{t}")
    C("addresses for the tail")
    A(f"v_lshrrev_b32 v16, 4, v{LANE}")
    A(f"v_and_b32 v17, 15, v{LANE}")
    A(f"s_mul_i32 s56, s{sW}, {OPS}")
    A("v_lshl_add_u32 v18, v17, 5, s56")
    A("v_lshl_add_u32 v18, v16, 4, v18")
    A(f"v_and_b32 v17, 7, v{LANE}")
    A(f"v_lshrrev_b32 v19, 3, v{LANE}")
    A(f"s_lshl_b32 s56, s{sW}, 6")
    A("v_lshl_add_u32 v20, v19, 3, s56")
    A(f"v_mov_b32 v21, {OPS}")
    A("v_mad_u32_u24 v21, v17, v21, v20")
    A(f"v_mov_b32 v22, {YPS}")
    A("v_mad_u32_u24 v22, v17, v22, v20")
    A(f"s_lshl_b32 s56, s{sS}, 10")
    A(f"s_lshl_b32 s57, s{sW}, 7")
    A("s_add_u32 s56, s56, s57")
    A("s_add_u32 s56, s56, s97")
    A("v_lshl_add_u32 v23, v19, 4, s56")
    A(f"s_lshl_b32 s56, s{sH}, 9")
    A("s_add_u32 s56, s56, s57")
    A("s_add_u32 s56, s56, s99")
    A("v_lshl_add_u32 v24, v19, 4, s56")
    A("v_lshrrev_b32 v25, 1, v16")
    A(f"v_mul_u32_u24 v25, {YPS}, v25")
    A(f"s_mul_i32 s56, s{sW}, {2 * YPS}")
    A("v_add_u32 v25, s56, v25")
    A("v_and_b32 v26, 1, v16")
    A("v_lshl_add_u32 v25, v26, 4, v25")
    A("v_lshl_add_u32 v25, v17, 5, v25")
    A(f"v_and_b32 v26, 31, v{LANE}")
    A(f"s_lshl_b32 s57, s{sH}, 4")
    A("s_add_u32 s56, s57, s99")
    if csx:
        assert spread in (0, 3)
        A(f"s_sub_u32 s57, s95, s{sS}")
        A("s_lshl_b32 s57, s57, 14")
        A("s_add_u32 s56, s56, s57")
    A("v_lshl_add_u32 v26, v26, 9, s56")
    A("v_mov_b32 v27, s42")
    A("v_lshlrev_b32 v28, 5, v17")
    A(f"s_lshl_b32 s56, s{sS}, 3")
    A("s_mov_b64 s[60:61], 0xff")
    A("s_lshl_b64 s[60:61], s[60:61], s56")
    A("s_not_b64 s[62:63], s[60:61]")
    A(f"s_lshl_b64 s[50:51], 1, s{sH}")
    A("s_andn2_b64 s[50:51], s[52:53], s[50:51]")
    if csx:
        A("s_mov_b64 s[50:51], s[52:53]")
    A(f"v_and_b32 v29, 15, v{LANE}")
    A(f"v_mul_u32_u24 v29, {YPS}, v29")
    A(f"s_lshl_b32 s56, s{sH}, 3")
    A("v_add_u32 v29, s56, v29")
    pacing[0] = False
    STAMPX("pvstart")
    pend.append(("XO", f"global_load_dword v{XO}, v27, s[8:9]"))
    if touch_out:
        pend.append(("TO", f"global_load_dword v{XP}, v27, s[26:27]"))

    wdone = [False]

    def wblock():
        C("softmax weights of the 8 slices from the 64 per-wave records")
        A(f"s_mov_b32 s58, {SPIN_MAX}")
        need("MLG")
        LBL("L_chk1")
        A(f"v_cmp_ne_u32 vcc, s{sTA}, v{MLG + 1}")
        A(f"v_cmp_ne_u32 s[56:57], s{sTB}, v{MLG + 3}")
        A("s_or_b64 vcc, vcc, s[56:57]")
        A("s_cbranch_scc0 L_ok1")
        A("s_sub_u32 s58, s58, 1")
        A("s_cbranch_scc1 L_ok1")
        if ml_block and slm:
            A(f"s_sleep {slm}")
        A(mltext)
        A("s_waitcnt vmcnt(0)")
        A("s_branch L_chk1")
        LBL("L_ok1")
        dpp("v_max_f32", 16, MLG + 2, MLG + 2, steps[0])
        A("s_nop 1")
        row_reduce("v_max_f32", [16], steps[1:3])
        dpp("v_max_f32", 10, 16, 16, "row_ror:8")
        cross_reduce("v_max_f32", 10, 11)
        A(f"v_sub_f32 v11, v{MLG + 2}, v10")
        A("v_sub_f32 v10, v16, v10")
        A("v_mul_f32 v11, 0x3fb8aa3b, v11")
        A("v_mul_f32 v10, 0x3fb8aa3b, v10")
        A("v_exp_f32 v11, v11")
        A("v_exp_f32 v10, v10")
        A(f"v_mul_f32 v11, v11, v{MLG}")
        A("s_nop 1")
        row_reduce("v_add_f32", [11])
        cross_reduce("v_add_f32", 11, 16)
        A("v_rcp_f32 v11, v11")
        A(f"s_mov_b32 s58, {SPIN_MAX}")
        A(f"v_mul_f32 v{vWT}, v10, v11")

    def mxblock():
        C("workgroup max from the 8 wave maxima; this wave's factor")
        A(f"s_mov_b32 s58, {SPIN_MAX * 16}")
        LBL("L_mxwait")
        A(f"ds_read_b32 v16, v31 offset:{CNT + 8}")
        A(f"ds_read_b128 v[48:51], v31 offset:{MX}")
        A(f"ds_read_b128 v[52:55], v31 offset:{MX + 16}")
        A("s_waitcnt lgkmcnt(0)")
        A("v_readfirstlane_b32 s56, v16")
        A("s_cmp_eq_u32 s56, 8")
        A("s_cbranch_scc1 L_mxok")
        A("s_sub_u32 s58, s58, 1")
        A("s_cbranch_scc0 L_mxwait")
        LBL("L_mxok")
        A("v_max3_f32 v48, v48, v49, v50")
        A("v_max3_f32 v51, v51, v52, v53")
        A("v_max3_f32 v48, v48, v54, v55")
        A("v_max_f32 v48, v48, v51")
        A("v_sub_f32 v10, v14, v48")
        A("v_mul_f32 v10, 0x3fb8aa3b, v10")
        A("v_exp_f32 v30, v10")
        STAMPX("mlok")

    for t in range(16):
        while f"V{t}" not in vm:
            issue_next()
        while pend and len(vm) - max(done[0], vm.index(f"V{t}")) < win(pend[0][0]):
            issue(*pend.pop(0), window=False)
        if t == mx_at:
            mxblock()
        if pre2 and t == pre2:
            C("wave 4 reads the y lines once, long before they are written")
            A(f"s_cmp_lg_u32 s{sW}, 4")
            A("s_cbranch_scc1 L_nopre2")
            A("s_mov_b64 exec, s[50:51]")
            A(f"global_load_dwordx4 v[56:59], v26, s[30:31] {hpol}")
            A("s_mov_b64 exec, -1")
            LBL("L_nopre2")
        if t == pre1:
            A("s_mov_b64 exec, s[62:63]")
            issue("PRE1", f"global_load_dwordx4 v[60:63], v{vOG}, s[30:31] {hpol}", window=False)
            A("s_mov_b64 exec, -1")
        if ml_block and not wdone[0] and "MLG" in vm and vm.index("MLG") < max(done[0] + 1, vm.index(f"V{t}")):
            assert vm.index("STML") < vm.index("MLG")
            wblock()
            wdone[0] = True
        need(f"V{t}")
        c = "0" if t == 0 else f"v[{DPV}:{DPV + 3}]"
        A(f"v_mfma_f32_16x16x32_bf16 v[{DPV}:{DPV + 3}], v[{KR + 4 * t}:{KR + 4 * t + 3}], v[{VR + 4 * t}:{VR + 4 * t + 3}], {c}")
        if t == 14:
            while pend:
                issue(*pend.pop(0), window=False)
    assert not pend and (wdone[0] or not ml_block)
    STAMPX("vland")
    A("s_mov_b64 exec, s[52:53]")
    A("s_nop 6")
    for r in range(4):
        A(f"v_mul_f32 v{DPV + r}, v30, v{DPV + r}")
    A(f"ds_write_b128 v18, v[{DPV}:{DPV + 3}] offset:{OP}")
    A("s_mov_b64 exec, -1")
    A("s_waitcnt lgkmcnt(0)")
    A("s_barrier")
    A(f"ds_read_b64 v[16:17], v21 offset:{OP}")
    A("s_waitcnt lgkmcnt(0)")
    dpp("v_add_f32", 14, 17, 17, steps[0])
    dpp("v_add_f32", 12, 16, 16, steps[0])
    A("s_nop 0")
    row_reduce("v_add_f32", [14, 12], steps[1:3])
    A("s_mov_b64 exec, s[54:55]")
    issue("STO", f"global_store_dwordx4 v23, v[12:15], s[30:31] {hpol}", window=False)
    OG = G1
    A("s_mov_b64 exec, s[62:63]")
    if first_delay:
        A(f"s_sleep {first_delay}")
    issue("OG", f"global_load_dwordx4 v[{KR}:{KR + 3}], v{vOG}, s[30:31] {hpol}", window=False)
    A("s_mov_b64 exec, -1")
    C("own slice: taken from registers, never re-read from memory")
    A("ds_bpermute_b32 v10, v28, v12")
    A("ds_bpermute_b32 v11, v28, v14")
    STAMPX("opub")
    C("w_down part of the output projection while the hand-off is in flight")
    need("WD")
    A(f"v_mfma_f32_16x16x32_bf16 v[{DY}:{DY + 3}], v[{AH}:{AH + 3}], v[{WD}:{WD + 3}], 0")
    A("s_mov_b64 exec, s[60:61]")
    A("s_waitcnt lgkmcnt(0)")
    A(f"v_mov_b32 v{OG}, v10")
    A(f"v_mov_b32 v{OG + 2}, v11")
    A("s_mov_b64 exec, -1")
    if not ml_block:
        wblock()
    else:
        A(f"s_mov_b32 s58, {SPIN_MAX}")
    STAMPX("wts")
    poll("O", P1, KR, vOG, 62, OG, OG + 2, sl1, 1)
    STAMPX("ook")
    A(f"v_mul_f32 v10, v{vWT}, v{OG}")
    A(f"v_mul_f32 v11, v{vWT}, v{OG + 2}")
    A("s_nop 1")
    A("v_permlane32_swap_b32 v10, v11")
    A("v_add_f32 v10, v10, v11")
    cross_reduce("v_add_f32", 10, 11, swaps=("16",))
    A("s_nop 1")
    dpp("v_add_f32", 10, 10, 10, "row_ror:8")
    A("v_cvt_pk_bf16_f32 v10, v10, v10")
    A("s_nop 1")
    for k in range(2):
        for b4 in range(2):
            for b in range(2):
                p = 4 * b4 + 2 * b + k
                A(f"v_mov_b32_dpp v{16 + k}, v10 row_newbcast:{p} row_mask:{(0x5, 0xa)[b4]:#x} bank_mask:{(0x3, 0xc)[b]:#x}")
    for k in range(2):
        for r in range(4):
            A(f"v_and_b32 v{48 + 4 * k + r}, v{16 + k}, v{ME[r]}")
    A("s_nop 0")
    A(f"v_mfma_f32_16x16x32_bf16 v[{DY}:{DY + 3}], v[48:51], v[{WO0}:{WO0 + 3}], v[{DY}:{DY + 3}]")
    A(f"v_mfma_f32_16x16x32_bf16 v[{DY}:{DY + 3}], v[52:55], v[{WO1}:{WO1 + 3}], v[{DY}:{DY + 3}]")
    A("s_mov_b64 exec, s[40:41]")
    A("s_nop 6")
    A(f"ds_write_b128 v25, v[{DY}:{DY + 3}] offset:{YP}")
    A("s_mov_b64 exec, -1")
    A("s_waitcnt lgkmcnt(0)")
    A("s_barrier")
    A(f"s_cmp_ge_u32 s{sW}, 4")
    A("s_cbranch_scc1 L_final")
    A(f"ds_read_b64 v[16:17], v22 offset:{YP}")
    A(f"ds_read_b64 v[18:19], v22 offset:{YP + 8 * YPS}")
    A("s_waitcnt lgkmcnt(0)")
    A("v_add_f32 v14, v17, v19")
    A("v_add_f32 v12, v16, v18")
    A("s_nop 0")
    row_reduce("v_add_f32", [14, 12], steps[:3])
    A("s_mov_b64 exec, s[54:55]")
    A(f"global_store_dwordx4 v24, v[12:15], s[30:31] {hpol}")
    if stamps:
        A("s_mov_b64 exec, -1")
        STAMPX("end")
        A("s_branch L_stamps")
    else:
        A("s_endpgm")
    LBL("L_final")
    A(f"s_cmp_lg_u32 s{sW}, 4")
    if stamps:
        STAMPX("end")
        A("s_cbranch_scc1 L_stamps")
    else:
        A("s_cbranch_scc1 L_end")
    A(f"s_mov_b32 s58, {SPIN_MAX}")
    C("own workgroup's piece straight from LDS (lanes 32..47), zero elsewhere")
    if not csx:
        A(f"ds_read_b64 v[20:21], v29 offset:{YP}")
    A("v_mov_b32 v16, 0")
    A("v_mov_b32 v18, 0")
    if not csx:
        A("s_mov_b32 exec_lo, 0")
        A("s_mov_b32 exec_hi, 0xffff")
        A("s_waitcnt lgkmcnt(0)")
        A("v_mov_b32 v16, v20")
        A("v_mov_b32 v18, v21")
    if fd2:
        A(f"s_sleep {fd2}")
    poll("Y", P2, KR + 32, 26, 50, 16, 18, sl2, 0)
    A("s_nop 0")
    A("v_permlane32_swap_b32 v16, v18")
    A("v_add_f32 v16, v16, v18")
    A(f"v_lshlrev_b32 v10, 16, v{XO}")
    A(f"v_and_b32 v11, 0xffff0000, v{XO}")
    row_reduce("v_add_f32", [16])
    cross_reduce("v_add_f32", 16, 17, swaps=("16",))
    A("s_nop 0")
    A("v_readlane_b32 s56, v16, 32")
    A("v_add_f32 v10, v10, v16")
    A("s_nop 0")
    A("v_add_f32 v11, s56, v11")
    A("v_cvt_pk_bf16_f32 v10, v10, v11")
    A("s_mov_b64 exec, 1")
    A(f"global_store_dword v27, v10, s[26:27] {opol}")
    A("s_cmp_lg_u32 s2, 0")
    A("s_cbranch_scc1 L_nowbump")
    A(f"v_mov_b32 v12, {W_OFF}")
    A(f"global_store_dword v12, v13, s[30:31] {hpol}")
    LBL("L_nowbump")
    if stamps:
        A("s_mov_b64 exec, -1")
        STAMPX("end")
        LBL("L_stamps")
        ns = len(stamp_idx)
        nq = (ns + 1) // 2
        A("s_waitcnt lgkmcnt(0)")
        A("s_lshl_b32 s56, s2, 3")
        A(f"s_add_u32 s56, s56, s{sW}")
        A(f"s_mul_i32 s56, s56, {nq * 16}")
        A(f"s_add_u32 s56, s56, {STAMP:#x}")
        A("v_mov_b32 v10, s56")
        A("s_mov_b64 exec, 1")
        for q in range(nq):
            for j in range(4):
                k = 4 * q + j
                if k >= 2 * ns:
                    k -= 2
                A(f"v_mov_b32 v{12 + j}, s{64 + k}")
            A(f"global_store_dwordx4 v10, v[12:15], s[30:31] offset:{q * 16}")
            A("s_nop 2")
        print("stamps per wave:", nq * 2, list(stamp_idx), file=sys.stderr)
    LBL("L_end")
    A("s_endpgm")
    L.append('.section .rodata,"a"')
    L.append(".p2align 6")
    L.append(f".amdhsa_kernel {NAME}_kernel")
    L.append("  .amdhsa_next_free_vgpr 256")
    L.append("  .amdhsa_next_free_sgpr 102")
    L.append("  .amdhsa_accum_offset 256")
    L.append("  .amdhsa_group_segment_fixed_size 0")
    L.append("  .amdhsa_kernarg_size 96")
    L.append("  .amdhsa_user_sgpr_count 2")
    L.append("  .amdhsa_user_sgpr_kernarg_segment_ptr 1")
    L.append("  .amdhsa_system_sgpr_workgroup_id_x 1")
    L.append("  .amdhsa_float_denorm_mode_32 3")
    L.append(".end_amdhsa_kernel")
    return "\n".join(L) + "\n"


if __name__ == "__main__":
    out = sys.argv[1]
    kw = {}
    for a in sys.argv[2:]:
        k, v = a.split("=")
        try:
            v = int(v)
        except ValueError:
            pass
        kw[k] = v
    open(out, "w").write(gen(**kw))
```

```python
import sys
from gen import NAME, HEADER

W_OFF = 0
REC0 = 0x10000
MLR = 0x100000
OREC = 0x110000
YREC = 0x160000
STAMP = 512 << 20
P0P = 0
QF = 8192
CNT = 9216
MX = 9248
OP = 9472
OPS = 544
YP = OP + 8 * OPS
YPS = 288
LDS_BYTES = YP + 16 * YPS

C_TAG = 0x9E3779B9
C_TAGB = 0x5BD1E995
SPIN_MAX = 1 << 18
ALL_STAMPS = ["entry", "kernarg", "x", "p0w", "bar1", "gissue", "gok", "qok", "stml", "pvstart", "mlok", "vland", "opub", "wts", "ook", "end"]


def gen(pol="nt", stamps="", rot=0, D=5, g_after=11, ml_after=11, w_after=15, k_pre=2, prio=0, hpol="sc1", chunk=36, p0pol=None, wpol=None, qdelay=4, touch_out=0, sl1=4, sl2=2, sl0=0, first_delay=0, mx_at=11, P1=3, P2=3, fd2=0, pre2=0, opol="", DV=None, DL=None, last_n=8, prios="", boost=0, DW=None, pn=16, spread=0, ml_block=0, slm=4, tlb=0, pre1=-1, csx=0, fast2=0, nfast=64):
    L = []
    p0pol = pol if p0pol is None else p0pol
    wpol = pol if wpol is None else wpol
    stamps = ALL_STAMPS if stamps == "all" else [s for s in stamps.split(",") if s]

    vm = []
    done = [0]
    pend = []
    cnt = [0]
    pacing = [False]

    def RAW(s):
        L.append("    " + s)

    def A(s):
        RAW(s)
        if pacing[0]:
            cnt[0] += 1
            if cnt[0] >= chunk and pend and not nopace[0]:
                issue_next()

    nopace = [False]

    def C(s):
        L.append("    ; " + s)

    def LBL(s):
        L.append(s + ":")

    def need(name):
        i = vm.index(name)
        if i >= done[0]:
            RAW(f"s_waitcnt vmcnt({len(vm) - 1 - i})")
            done[0] = i + 1

    DV = D if DV is None else DV
    DL = DV if DL is None else DL
    priomap = dict(x.split(":") for x in prios.split(",") if x)

    def win(name):
        if name[0] == "K" or name == "G":
            return D
        if name[0] == "V" and int(name[1:]) < 16 - last_n:
            return DV
        if name[0] != "V" and name != "MLG" and DW is not None:
            return DW
        return DL

    def issue(name, text, window=True):
        d = win(name)
        if window and len(vm) - done[0] >= d:
            n = d - 1
            RAW(f"s_waitcnt vmcnt({n})")
            done[0] = len(vm) - n
        RAW(text)
        vm.append(name)
        cnt[0] = 0
        if name in priomap:
            RAW(f"s_setprio {priomap[name]}")

    def issue_next():
        name, text = pend.pop(0)
        issue(name, text)

    stamp_idx = {}

    def STAMPX(tag):
        if tag in stamps:
            i = stamp_idx.setdefault(tag, len(stamp_idx))
            RAW(f"s_memrealtime s[{64 + 2 * i}:{65 + 2 * i}]")

    def dpp(op, d, s0, s1, ctrl, rm=0xF, bm=0xF):
        A(f"{op}_dpp v{d}, v{s0}, v{s1} {ctrl} row_mask:{rm:#x} bank_mask:{bm:#x}")

    steps = ["quad_perm:[1,0,3,2]", "quad_perm:[2,3,0,1]", "row_half_mirror", "row_mirror"]

    def row_reduce(op, regs, st=steps):
        for s in st:
            for r in regs:
                dpp(op, r, r, r, s)
            if len(regs) < 3:
                A(f"s_nop {2 - len(regs)}")

    def cross_reduce(op, r, t, swaps=("16", "32")):
        for sw in swaps:
            A(f"v_mov_b32 v{t}, v{r}")
            A("s_nop 1")
            A(f"v_permlane{sw}_swap_b32 v{t}, v{r}")
            A(f"{op} v{r}, v{t}, v{r}")

    def poll(tag, P, base, vaddr, spend, f0, f1, sleep, pre_issued, fall=False):
        ld = lambda j: f"global_load_dwordx4 v[{base + 4 * j}:{base + 4 * j + 3}], v{vaddr}, s[30:31] {hpol}"
        A(f"s_mov_b64 exec, s[{spend}:{spend + 1}]")
        for j in range(pre_issued, P - 1):
            A(ld(j))
            if sleep:
                A(f"s_sleep {sleep}")
        if P == 1 and pre_issued:
            A(f"s_branch L_skip{tag}")
        LBL(f"L_poll{tag}")
        for j in range(P):
            A(ld((j + P - 1) % P))
            if P == 1 and pre_issued:
                LBL(f"L_skip{tag}")
            A(f"s_waitcnt vmcnt({P - 1})")
            A(f"v_cmp_eq_u32 vcc, s{sTA}, v{base + 4 * j + 1}")
            A(f"v_cmp_eq_u32 s[56:57], s{sTB}, v{base + 4 * j + 3}")
            A("s_and_b64 exec, vcc, s[56:57]")
            A(f"v_mov_b32 v{f0}, v{base + 4 * j}")
            A(f"v_mov_b32 v{f1}, v{base + 4 * j + 2}")
            A(f"s_andn2_b64 s[{spend}:{spend + 1}], s[{spend}:{spend + 1}], exec")
            A(f"s_cbranch_scc0 L_done{tag[0]}")
            A(f"s_mov_b64 exec, s[{spend}:{spend + 1}]")
            if sleep:
                A(f"s_sleep {sleep}")
        A("s_sub_u32 s58, s58, 1")
        A(f"s_cbranch_scc0 L_poll{tag}")
        if fall:
            return
        LBL(f"L_done{tag}")
        A("s_mov_b64 exec, -1")

    L.append(HEADER + f"; @launch grid=(256,1,1) block=(512,1,1) lds={LDS_BYTES}")
    L.append('.amdgcn_target "amdgcn-amd-amdhsa--gfx950"')
    L.append(".text")
    L.append(f".globl {NAME}_kernel")
    L.append(".p2align 8")
    L.append(f".type {NAME}_kernel,@function")
    L.append(f"{NAME}_kernel:")

    LANE = 1
    ME = [2, 3, 4, 5]
    Q = [6, 7, 8, 9]
    KOFF = list(range(32, 48))
    AT = list(range(48, 64))
    KR, VR = 64, 128
    X, XP, XO = 192, 196, 197
    WQA, WQB, WGA, WGB = 200, 204, 208, 212
    G0, G1 = 216, 220
    WO0, WO1, WD = 224, 228, 232
    AH, DPV, DY = 236, 240, 244
    vWO, vWD, vOG, vMLG, vG, vWT, vR = 248, 249, 250, 251, 252, 253, 254
    sH, sS, sW = 3, 4, 5
    sTA, sTB = 33, 34

    def kload(t):
        return (f"K{t}", f"global_load_dwordx4 v[{KR + 4 * t}:{KR + 4 * t + 3}], v{KOFF[t]}, s[10:11] {pol}")

    def vload(t):
        return (f"V{t}", f"global_load_dwordx4 v[{VR + 4 * t}:{VR + 4 * t + 3}], v{KOFF[t]}, s[12:13] {pol}")

    gtext = f"global_load_dwordx4 v[{G0}:{G0 + 3}], v{vG}, s[30:31] {hpol}"
    wl = [("WD", f"global_load_dwordx4 v[{WD}:{WD + 3}], v{vWD}, s[24:25] {wpol}"),
          ("WO0", f"global_load_dwordx4 v[{WO0}:{WO0 + 3}], v{vWO}, s[16:17] {wpol}"),
          ("WO1", f"global_load_dwordx4 v[{WO1}:{WO1 + 3}], v{vWO}, s[16:17] offset:2048 {wpol}")]

    STAMPX("entry")
    A("s_cmp_ge_u32 s2, 256")
    A("s_cbranch_scc1 L_end")
    A("s_load_dwordx16 s[8:23], s[0:1], 0")
    A("s_load_dwordx8 s[24:31], s[0:1], 64")
    if prio or prios:
        A("s_setprio 3")
    A("v_lshrrev_b32 v10, 6, v0")
    A(f"v_and_b32 v{LANE}, 63, v0")
    A(f"s_lshr_b32 s{sH}, s2, 3")
    A(f"v_readfirstlane_b32 s{sW}, v10")
    A(f"s_and_b32 s{sS}, s2, 7")
    C("lane fields: v11 = g, v12 = i, v13 = b, v14 = e")
    A(f"v_lshrrev_b32 v11, 4, v{LANE}")
    A(f"v_and_b32 v12, 15, v{LANE}")
    A(f"v_bfe_u32 v13, v{LANE}, 3, 1")
    A(f"v_and_b32 v14, 7, v{LANE}")
    C("s = 4*ch + rb ; s6 = 128 rb + 16 w = first weight row of this wave")
    A(f"s_and_b32 s6, s{sS}, 3")
    A("s_lshl_b32 s6, s6, 7")
    A(f"s_lshl_b32 s7, s{sW}, 4")
    A("s_add_u32 s6, s6, s7")
    A(f"s_lshr_b32 s35, s{sS}, 2")
    A("v_lshl_add_u32 v15, v11, 2, s6")
    A("v_lshl_add_u32 v21, v13, 1, v15")
    A("v_xor_b32 v23, 1, v13")
    A("v_lshl_add_u32 v23, v23, 1, v15")
    A(f"v_lshlrev_b32 v16, 4, v{LANE}")
    A("v_lshlrev_b32 v17, 1, v21")
    C("wq offset: row*8192 + 256h + 128ch + 16e")
    A(f"s_lshl_b32 s43, s{sH}, 8")
    A("s_lshl_b32 s42, s35, 7")
    A("s_add_u32 s43, s43, s42")
    A("v_lshl_add_u32 v19, v14, 4, s43")
    A("v_lshl_add_u32 v19, v21, 13, v19")
    A("v_add_u32 v20, 0x2000, v19")
    C("gate/up offset")
    A(f"s_mul_i32 s44, s{sH}, 43")
    A("s_and_b32 s45, s44, 7")
    A("s_andn2_b32 s46, s44, 7")
    A("s_lshl_b32 s46, s46, 1")
    A("s_add_u32 s47, s45, 42")
    A("s_lshr_b32 s47, s47, 3")
    A("v_min_u32 v22, s47, v14")
    A("v_lshl_add_u32 v22, v22, 4, s46")
    A("s_movk_i32 s48, 2752")
    A("v_mad_u32_u24 v22, v23, s48, v22")
    C("K/V offsets")
    A(f"s_lshl_b32 s49, s{sH}, 23")
    A(f"s_mul_i32 s50, s{sS}, {pn * 8192}")
    A("s_add_u32 s49, s49, s50")
    A(f"s_add_u32 s49, s49, {28672 * 256}")
    A(f"v_lshl_add_u32 v{KOFF[0]}, v0, 4, s49")

    def koffs(lo, hi):
        for t in range(lo, hi):
            if rot == 0:
                if t:
                    A(f"v_add_u32 v{KOFF[t]}, {(t // pn) * 8 * pn * 8192 + (t % pn) * 8192:#x}, v{KOFF[0]}")
            else:
                A(f"s_add_u32 s51, s50, {t}")
                A("s_and_b32 s51, s51, 15")
                A("s_lshl_b32 s51, s51, 13")
                A(f"v_add_u32 v{KOFF[t]}, s51, v28")
    if rot:
        A(f"v_mov_b32 v28, v{KOFF[0]}")
        A(f"s_mul_i32 s50, s{sH}, {rot}")
    koffs(0, 16)
    A("v_mov_b32 v24, 0")
    A("v_mov_b32 v25, 0")
    A("v_mov_b32 v26, 0")
    A("v_mov_b32 v27, 0")
    A(f"ds_write_b128 v24, v[24:27] offset:{CNT}")
    A("s_cmp_eq_u32 s35, 0")
    A("s_waitcnt lgkmcnt(0)")
    STAMPX("kernarg")
    issue("X", f"global_load_dwordx4 v[{X}:{X + 3}], v16, s[8:9]", False)
    issue("XP", f"global_load_dword v{XP}, v17, s[8:9]", False)
    A("s_cselect_b32 s20, s20, s22")
    A("s_cselect_b32 s21, s21, s23")
    issue("WQA", f"global_load_dwordx4 v[{WQA}:{WQA + 3}], v19, s[14:15] {p0pol}", False)
    issue("WQB", f"global_load_dwordx4 v[{WQB}:{WQB + 3}], v20, s[14:15] {p0pol}", False)
    issue("WGA", f"global_load_dwordx4 v[{WGA}:{WGA + 3}], v22, s[20:21] {p0pol}", False)
    issue("WGB", f"global_load_dwordx4 v[{WGB}:{WGB + 3}], v22, s[20:21] offset:2752 {p0pol}", False)
    A(f"s_load_dword s32, s[30:31], {W_OFF}")
    if tlb:
        C("touch the pages used later (address translation is then warm): wave 0,5.. V, 1 wo, 2 w_down, 3 ws, 4 out")
        A("s_mov_b64 s[56:57], s[12:13]")
        A("s_mov_b32 s58, s49")
        A(f"s_lshl_b32 s59, s{sH}, 17")
        A(f"s_cmp_eq_u32 s{sW}, 1")
        A("s_cselect_b64 s[56:57], s[16:17], s[56:57]")
        A("s_cselect_b32 s58, s59, s58")
        A("s_lshl_b32 s59, s44, 10")
        A(f"s_cmp_eq_u32 s{sW}, 2")
        A("s_cselect_b64 s[56:57], s[24:25], s[56:57]")
        A("s_cselect_b32 s58, s59, s58")
        A(f"s_bfe_u32 s59, s{sH}, 0x10003")
        A("s_lshl_b32 s59, s59, 23")
        A(f"s_add_u32 s59, s59, {0x7000 if spread else 0x8000}") if spread else A("s_mov_b32 s59, 0x8000")
        A(f"s_cmp_eq_u32 s{sW}, 3")
        A("s_cselect_b64 s[56:57], s[30:31], s[56:57]")
        A("s_cselect_b32 s58, s59, s58")
        A(f"s_cmp_eq_u32 s{sW}, 4")
        A("s_cselect_b64 s[56:57], s[26:27], s[56:57]")
        A("s_cselect_b32 s58, 0, s58")
        A("v_mov_b32 v24, s58")
        issue("TLB", f"global_load_dword v255, v24, s[56:57] {pol}", False)
    A("s_barrier")
    if prio:
        A("s_setprio 0")
    for t in range(k_pre):
        issue(*kload(t), window=False)
    C("lane masks")
    A("s_mov_b32 s36, 0xcccccccc")
    A("s_mov_b32 s37, 0xcccccccc")
    A("s_mov_b32 s38, 0xaaaaaaaa")
    A("s_mov_b32 s39, 0xaaaaaaaa")
    A("s_mov_b32 s40, 0x00ff00ff")
    A("s_mov_b32 s41, 0xff00ff00")
    A("s_mov_b32 s52, -1")
    A("s_mov_b32 s53, 0")
    A("s_mov_b32 s54, 0x01010101")
    A("s_mov_b32 s55, 0x01010101")
    A(f"v_and_b32 v24, 1, v{LANE}")
    A("v_lshlrev_b32 v24, 4, v24")
    A("v_mov_b32 v25, 0xffff")
    A("v_lshlrev_b32 v24, v24, v25")
    for r in range(4):
        m = (0x03030303 << (2 * r)) & 0xFFFFFFFF
        A(f"s_mov_b32 s56, {m:#x}")
        A(f"s_mov_b32 s57, {m:#x}")
        A(f"v_cndmask_b32 v{ME[r]}, 0, v24, s[56:57]")
    C("output byte offset 128 cs + 4 h")
    A(f"s_xor_b32 s95, s{sS}, {csx}")
    A("s_lshl_b32 s42, s95, 7")
    A(f"s_lshl_b32 s43, s{sH}, 2")
    A("s_add_u32 s42, s42, s43")
    C("wo offset: (128h + 16w + 8(g&1) + 4b + (g>>1))*1024 + 128s + 16e")
    A("v_and_b32 v24, 1, v11")
    A("v_lshlrev_b32 v24, 3, v24")
    A("v_lshl_add_u32 v24, v13, 2, v24")
    A("v_lshrrev_b32 v25, 1, v11")
    A("v_add_u32 v24, v24, v25")
    A(f"s_lshl_b32 s56, s{sH}, 7")
    A("s_add_u32 s56, s56, s7")
    A("v_add_u32 v24, s56, v24")
    A(f"s_lshl_b32 s57, s{sS}, 7")
    A("v_lshl_add_u32 v25, v14, 4, s57")
    A(f"v_lshl_add_u32 v{vWO}, v24, 10, v25")
    C("w_down: r = 8w + 2g + b ; row = 43h + min(r,42)")
    A("v_lshl_add_u32 v24, v11, 1, v13")
    A(f"s_lshl_b32 s56, s{sW}, 3")
    A(f"v_add_u32 v{vR}, s56, v24")
    A(f"v_min_u32 v24, 42, v{vR}")
    A("v_add_u32 v26, s44, v24")
    A(f"v_lshl_add_u32 v{vWD}, v26, 10, v25")
    A("v_add_u32 v24, s45, v24")
    A("v_lshlrev_b32 v31, 2, v24")
    C("hand-off record bases: s96 rec0(h), s97 orec(h), s98 ml(h), s99 yrec(cs)")
    if spread == 2:
        A(f"s_and_b32 s56, s{sH}, 7")
        A("s_lshl_b32 s56, s56, 17")
        A(f"s_lshr_b32 s57, s{sH}, 3")
        A("s_mul_i32 s57, s57, 0x5000")
        A("s_add_u32 s56, s56, s57")
        A("s_add_u32 s96, s56, 0x1000")
        A("s_add_u32 s97, s56, 0x3000")
        A("s_add_u32 s98, s56, 0x5000")
        A(f"s_lshl_b32 s56, s{sS}, 17")
        A("s_add_u32 s99, s56, 0x18000")
    elif spread == 3:
        A(f"s_lshl_b32 s56, s{sH}, 15")
        A("s_add_u32 s96, s56, 0x1000")
        A("s_add_u32 s97, s56, 0x3000")
        A("s_add_u32 s98, s56, 0x5000")
        A(f"s_lshl_b32 s56, s{sS}, 14")
        A(f"s_add_u32 s99, s56, {YREC:#x}")
    elif spread:
        A(f"s_and_b32 s56, s{sH}, 7")
        A("s_lshl_b32 s56, s56, 17")
        A(f"s_bfe_u32 s57, s{sH}, 0x10003")
        A("s_lshl_b32 s57, s57, 23")
        A("s_add_u32 s56, s56, s57")
        A(f"s_lshr_b32 s57, s{sH}, 4")
        A("s_lshl_b32 s57, s57, 15")
        A("s_add_u32 s56, s56, s57")
        A("s_add_u32 s96, s56, 0x1000")
        A("s_add_u32 s97, s56, 0x3000")
        A("s_add_u32 s98, s56, 0x5000")
        A(f"s_lshl_b32 s56, s{sS}, 17")
        A("s_add_u32 s99, s56, 0x10000")
    else:
        A(f"s_lshl_b32 s56, s{sH}, 13")
        A(f"s_add_u32 s96, s56, {REC0:#x}")
        A(f"s_add_u32 s97, s56, {OREC:#x}")
        A(f"s_lshl_b32 s56, s{sH}, 10")
        A(f"s_add_u32 s98, s56, {MLR:#x}")
        A(f"s_lshl_b32 s56, s{sS}, 14")
        A(f"s_add_u32 s99, s56, {YREC:#x}")
    C("gather offsets")
    A(f"v_lshrrev_b32 v24, 3, v{LANE}")
    A(f"s_lshl_b32 s57, s{sW}, 7")
    A("v_lshlrev_b32 v25, 10, v24")
    A("v_lshl_add_u32 v25, v14, 4, v25")
    A("v_add_u32 v25, s57, v25")
    A(f"v_add_u32 v{vG}, s96, v25")
    A(f"v_add_u32 v{vOG}, s97, v25")
    A(f"v_lshl_add_u32 v{vMLG}, v{LANE}, 4, s98")
    C("LDS write address of the phase-0 partials")
    A("v_lshrrev_b32 v24, 1, v11")
    A(f"s_lshl_b32 s56, s{sW}, 10")
    A("v_lshl_add_u32 v25, v24, 9, s56")
    A("v_and_b32 v26, 1, v11")
    A("v_lshl_add_u32 v25, v26, 4, v25")
    A("v_lshl_add_u32 v30, v14, 5, v25")
    A("v_xor_b32 v26, v24, v13")
    A("v_lshl_add_u32 v30, v26, 8, v30")
    C("LDS write address of the gathered q/gate/up value")
    A(f"v_bfe_u32 v24, v{LANE}, 4, 1")
    A("v_lshl_add_u32 v24, v14, 1, v24")
    A(f"v_lshrrev_b32 v25, 5, v{LANE}")
    A("v_lshl_add_u32 v24, v25, 6, v24")
    A(f"s_lshr_b32 s56, s{sW}, 2")
    A("s_lshl_b32 s56, s56, 6")
    A("s_add_u32 s56, s56, s7")
    A("v_add_lshl_u32 v29, v24, s56, 2")

    pend.extend(kload(t) for t in range(k_pre, 16))
    pend.insert(g_after + 1 - k_pre, ("G", gtext))
    pend.extend(vload(t) for t in range(16))
    for i, w in enumerate(wl):
        pend.insert([n for n, _ in pend].index(f"V{w_after}") + 1 + i, w)
    MLG = G0
    mltext = f"global_load_dwordx4 v[{MLG}:{MLG + 3}], v{vMLG}, s[30:31] {hpol}"
    pend.insert([n for n, _ in pend].index(f"V{ml_after}") + 1, ("MLG", mltext))
    C("layernorm")
    need("XP")
    STAMPX("x")
    for k in range(4):
        A(f"v_lshlrev_b32 v{10 + 2 * k}, 16, v{X + k}")
        A(f"v_and_b32 v{11 + 2 * k}, 0xffff0000, v{X + k}")
    A("v_add_f32 v18, v10, v11")
    A("v_add_f32 v19, v12, v13")
    A("v_add_f32 v20, v14, v15")
    A("v_add_f32 v21, v16, v17")
    A("v_add_f32 v18, v18, v19")
    A("v_add_f32 v20, v20, v21")
    A("v_add_f32 v18, v18, v20")
    A("s_nop 1")
    row_reduce("v_add_f32", [18])
    cross_reduce("v_add_f32", 18, 19)
    A("v_mul_f32 v18, 0x3b000000, v18")
    for k in range(8):
        A(f"v_sub_f32 v{10 + k}, v{10 + k}, v18")
    A("v_mul_f32 v19, v10, v10")
    A("v_mul_f32 v20, v11, v11")
    for k in range(2, 8, 2):
        A(f"v_fmac_f32 v19, v{10 + k}, v{10 + k}")
        A(f"v_fmac_f32 v20, v{11 + k}, v{11 + k}")
    A("v_add_f32 v19, v19, v20")
    A("s_nop 1")
    row_reduce("v_add_f32", [19])
    cross_reduce("v_add_f32", 19, 20)
    A("v_mul_f32 v19, 0x3b000000, v19")
    A("v_cvt_pk_bf16_f32 v20, v18, v19")
    A("v_lshlrev_b32 v18, 16, v20")
    A("v_and_b32 v19, 0xffff0000, v20")
    A("v_add_f32 v19, 0x3727c5ac, v19")
    A("v_cvt_pk_bf16_f32 v19, v19, v19")
    A("v_lshlrev_b32 v19, 16, v19")
    A("v_sqrt_f32 v19, v19")
    A(f"v_lshlrev_b32 v21, 16, v{XP}")
    A(f"v_and_b32 v22, 0xffff0000, v{XP}")
    A("v_cvt_pk_bf16_f32 v19, v19, v19")
    A("v_lshlrev_b32 v19, 16, v19")
    A("v_rcp_f32 v20, v19")
    A("v_sub_f32 v21, v21, v18")
    A("v_sub_f32 v22, v22, v18")
    A("v_cvt_pk_bf16_f32 v21, v21, v22")
    A("v_and_b32 v22, 0xffff0000, v21")
    A("v_lshlrev_b32 v21, 16, v21")
    A("v_mul_f32 v10, v21, v20")
    A("v_mul_f32 v11, v22, v20")
    A("v_fma_f32 v12, -v10, v19, v21")
    A("v_fma_f32 v13, -v11, v19, v22")
    A("v_fmac_f32 v10, v12, v20")
    A("v_fmac_f32 v11, v13, v20")
    A("v_cvt_pk_bf16_f32 v10, v10, v10")
    A("v_cvt_pk_bf16_f32 v11, v11, v11")
    for r in range(4):
        A(f"v_and_b32 v{20 + r}, v10, v{ME[r]}")
    for r in range(4):
        A(f"v_and_b32 v{24 + r}, v11, v{ME[r]}")
    need("WGB")
    STAMPX("p0w")
    DQ, DG = 48, 52
    A(f"v_mfma_f32_16x16x32_bf16 v[{DQ}:{DQ + 3}], v[20:23], v[{WQA}:{WQA + 3}], 0")
    A(f"v_mfma_f32_16x16x32_bf16 v[{DG}:{DG + 3}], v[20:23], v[{WGA}:{WGA + 3}], 0")
    A(f"v_mfma_f32_16x16x32_bf16 v[{DQ}:{DQ + 3}], v[24:27], v[{WQB}:{WQB + 3}], v[{DQ}:{DQ + 3}]")
    A(f"v_mfma_f32_16x16x32_bf16 v[{DG}:{DG + 3}], v[24:27], v[{WGB}:{WGB + 3}], v[{DG}:{DG + 3}]")
    nfill = 0
    while len(vm) - done[0] < D and pend[0][0] != "G":
        issue_next()
        nfill += 1
    A(f"s_nop {max(0, 7 - nfill)}")
    for r in range(4):
        A(f"v_cndmask_b32 v{DQ + r}, v{DG + r}, v{DQ + r}, s[40:41]")
    A(f"ds_write_b128 v30, v[{DQ}:{DQ + 3}] offset:{P0P}")
    A("v_mov_b32 v28, 0")
    A("v_mov_b32 v27, 1")
    A("s_mov_b64 exec, 1")
    A(f"ds_add_rtn_u32 v10, v28, v27 offset:{CNT}")
    A("s_mov_b64 exec, -1")
    A("s_waitcnt lgkmcnt(0)")
    A("v_readfirstlane_b32 s56, v10")
    A(f"s_add_u32 s{sTA}, s32, {C_TAG:#x}")
    A(f"s_xor_b32 s{sTB}, s{sTA}, {C_TAGB:#x}")
    STAMPX("bar1")
    A("s_cmp_lg_u32 s56, 7")
    A("s_cbranch_scc1 L_nopub0")
    C("the wave that arrived last sums the 16 partials and publishes 64 pieces")
    for name, text in pend[:boost]:
        RAW(text)
    A(f"v_lshlrev_b32 v10, 3, v{LANE}")
    B0 = 192
    for p in range(16):
        A(f"ds_read_b64 v[{B0 + 2 * p}:{B0 + 2 * p + 1}], v10 offset:{P0P + p * 512}")
    A(f"s_lshl_b32 s56, s{sS}, 10")
    A("s_add_u32 s56, s56, s96")
    A(f"v_lshl_add_u32 v11, v{LANE}, 4, s56")
    A(f"v_mov_b32 v13, s{sTA}")
    A(f"v_mov_b32 v15, s{sTB}")
    A("s_waitcnt lgkmcnt(0)")
    n = 16
    while n > 1:
        n //= 2
        for p in range(n):
            for c in range(2):
                dst = B0 + 2 * p + c if n > 1 else 12 + 2 * c
                A(f"v_add_f32 v{dst}, v{B0 + 2 * p + c}, v{B0 + 2 * (p + n) + c}")
    A(f"global_store_dwordx4 v11, v[12:15], s[30:31] {hpol}")
    C("(this store is one extra vm op in wave 0 only: every later counted wait only gets stricter for it)")
    if boost:
        A("s_branch L_join0")
    LBL("L_nopub0")
    if boost:
        d0 = done[0]
        for _ in range(boost):
            issue_next()
        done[0] = d0
        LBL("L_join0")
    while pend[0][0] != "G":
        issue_next()
    issue_next()
    STAMPX("gissue")
    while len(vm) - 1 - vm.index("G") < D - 1:
        issue_next()
    A(f"s_mov_b32 s58, {SPIN_MAX}")
    need("G")
    LBL("L_chk0")
    A(f"v_cmp_ne_u32 vcc, s{sTA}, v{G0 + 1}")
    A(f"v_cmp_ne_u32 s[56:57], s{sTB}, v{G0 + 3}")
    A("s_or_b64 vcc, vcc, s[56:57]")
    A("s_cbranch_scc0 L_ok0")
    A("s_sub_u32 s58, s58, 1")
    A("s_cbranch_scc1 L_ok0")
    A(gtext)
    A("s_waitcnt vmcnt(0)")
    A("s_branch L_chk0")
    LBL("L_ok0")
    STAMPX("gok")
    C("sum over the 4 row blocks (lane bits 4,3); lane bit 5 = column half / matrix")
    A(f"v_permlane16_swap_b32 v{G0}, v{G0 + 2}")
    A(f"v_add_f32 v10, v{G0}, v{G0 + 2}")
    A(f"v_and_b32 v12, 15, v{LANE}")
    A("v_lshlrev_b32 v12, 5, v12")
    dpp("v_add_f32", 10, 10, 10, "row_ror:8")
    A(f"ds_write_b32 v29, v10 offset:{QF}")
    A("s_mov_b64 exec, 1")
    A(f"ds_add_u32 v28, v27 offset:{CNT + 4}")
    A("s_mov_b64 exec, -1")
    for _ in range(qdelay):
        issue_next()
    A(f"s_mov_b32 s58, {SPIN_MAX * 16}")
    LBL("L_qwait")
    A(f"ds_read_b32 v11, v28 offset:{CNT + 4}")
    A(f"ds_read_b128 v[16:19], v12 offset:{QF}")
    A(f"ds_read_b128 v[20:23], v12 offset:{QF + 16}")
    A(f"ds_read_b32 v24, v31 offset:{QF + 512}")
    A(f"ds_read_b32 v25, v31 offset:{QF + 768}")
    A("s_waitcnt lgkmcnt(0)")
    A("v_readfirstlane_b32 s56, v11")
    A("s_cmp_eq_u32 s56, 8")
    A("s_cbranch_scc1 L_qok")
    A("s_sub_u32 s58, s58, 1")
    A("s_cbranch_scc0 L_qwait")
    LBL("L_qok")
    STAMPX("qok")
    for k in range(4):
        A(f"v_cvt_pk_bf16_f32 v{Q[k]}, v{16 + 2 * k}, v{17 + 2 * k}")
    pacing[0] = True
    C("scores")
    for grp in range(4):
        while f"K{4 * grp + 3}" not in vm:
            issue_next()
        need(f"K{4 * grp + 3}")
        for j in range(4):
            for t in range(4 * grp, 4 * grp + 4):
                src2 = "0" if j == 0 else f"v{AT[t]}"
                A(f"v_dot2_f32_bf16 v{AT[t]}, v{KR + 4 * t + j}, v{Q[j]}, {src2}")
    C("GEGLU activation for this lane's hidden unit, interleaved with the transposing score reduction")
    A("v_cvt_pk_bf16_f32 v24, v24, v25")
    A("v_lshlrev_b32 v26, 16, v24")
    A("v_and_b32 v25, 0xffff0000, v24")
    A("v_mul_f32 v27, v26, v26")
    A("v_mul_f32 v27, v27, v26")
    A("v_mov_b32 v28, v26")
    A("v_fmac_f32 v28, 0x3d372713, v27")
    A("v_mul_f32 v28, 0xc0135761, v28")
    A("v_exp_f32 v28, v28")
    for t in range(8):
        dpp("v_add_f32", AT[t], AT[t], AT[t], "row_ror:8", bm=0x3)
        dpp("v_add_f32", AT[t], AT[t + 8], AT[t + 8], "row_ror:8", bm=0xC)
    A("v_add_f32 v28, 1.0, v28")
    A("v_rcp_f32 v28, v28")
    for t in range(4):
        dpp("v_add_f32", AT[t], AT[t], AT[t], "row_half_mirror", bm=0x5)
        dpp("v_add_f32", AT[t], AT[t + 4], AT[t + 4], "row_half_mirror", bm=0xA)
    A("v_mul_f32 v28, v26, v28")
    A("v_cvt_pk_bf16_f32 v28, v28, v28")
    for t in range(4):
        dpp("v_add_f32", AT[t], AT[t], AT[t], "quad_perm:[2,3,0,1]")
    A("v_lshlrev_b32 v28, 16, v28")
    A(f"v_cndmask_b32 v{AT[0]}, v{AT[0]}, v{AT[2]}, s[36:37]")
    A(f"v_cndmask_b32 v{AT[1]}, v{AT[1]}, v{AT[3]}, s[36:37]")
    A("v_mul_f32 v28, v28, v25")
    A(f"v_cmp_gt_u32 vcc, 43, v{vR}")
    dpp("v_add_f32", AT[0], AT[0], AT[0], "quad_perm:[1,0,3,2]")
    dpp("v_add_f32", AT[1], AT[1], AT[1], "quad_perm:[1,0,3,2]")
    A("v_cndmask_b32 v28, 0, v28, vcc")
    A(f"v_cndmask_b32 v10, v{AT[0]}, v{AT[1]}, s[38:39]")
    A("v_cvt_pk_bf16_f32 v28, v28, v28")
    A("v_cvt_pk_bf16_f32 v10, v10, v10")
    for r in range(4):
        A(f"v_and_b32 v{AH + r}, v28, v{ME[r]}")
    A("v_lshlrev_b32 v10, 16, v10")
    A("v_mul_f32 v10, 0x3db504f3, v10")
    A("v_cvt_pk_bf16_f32 v10, v10, v10")
    A("v_lshlrev_b32 v10, 16, v10")
    A("v_mov_b32 v14, v10")
    A(f"s_lshl_b32 s56, s{sS}, 7")
    A(f"s_lshl_b32 s57, s{sW}, 4")
    row_reduce("v_max_f32", [14])
    cross_reduce("v_max_f32", 14, 12)
    A("s_add_u32 s56, s56, s57")
    A("s_add_u32 s56, s56, s98")
    A("v_mov_b32 v11, s56")
    A(f"v_mov_b32 v13, s{sTA}")
    A(f"v_mov_b32 v15, s{sTB}")
    A(f"s_lshl_b32 s56, s{sW}, 2")
    A("v_mov_b32 v17, s56")
    A("v_mov_b32 v30, 1")
    A("v_mov_b32 v31, 0")
    A("v_sub_f32 v10, v10, v14")
    A("v_mul_f32 v10, 0x3fb8aa3b, v10")
    A("v_exp_f32 v10, v10")
    A("s_nop 0")
    A("v_mov_b32 v12, v10")
    A("v_cvt_pk_bf16_f32 v10, v10, v10")
    A("s_nop 0")
    for t in range(16):
        if t < 4:
            dpp("v_add_f32", 12, 12, 12, steps[t])
        if t == 4:
            A("v_mov_b32 v16, v12")
        if t == 5:
            A("v_permlane16_swap_b32 v16, v12")
            A("v_add_f32 v12, v16, v12")
            A("v_mov_b32 v16, v12")
        if t == 6:
            A("v_permlane32_swap_b32 v16, v12")
            A("v_add_f32 v12, v16, v12")
        if t == 7:
            RAW("s_mov_b64 exec, 1")
            issue("STML", f"global_store_dwordx4 v11, v[12:15], s[30:31] {hpol}", window=False)
            RAW(f"ds_write_b32 v17, v14 offset:{MX}")
            RAW(f"ds_add_u32 v31, v30 offset:{CNT + 8}")
            RAW("s_mov_b64 exec, -1")
            STAMPX("stml")
        for r in range(4):
            dpp("v_and_b32", KR + 4 * t + r, 10, ME[r], f"row_newbcast:{t}")
    C("addresses for the tail")
    A(f"v_lshrrev_b32 v16, 4, v{LANE}")
    A(f"v_and_b32 v17, 15, v{LANE}")
    A(f"s_mul_i32 s56, s{sW}, {OPS}")
    A("v_lshl_add_u32 v18, v17, 5, s56")
    A("v_lshl_add_u32 v18, v16, 4, v18")
    A(f"v_and_b32 v17, 7, v{LANE}")
    A(f"v_lshrrev_b32 v19, 3, v{LANE}")
    A(f"s_lshl_b32 s56, s{sW}, 6")
    A("v_lshl_add_u32 v20, v19, 3, s56")
    A(f"v_mov_b32 v21, {OPS}")
    A("v_mad_u32_u24 v21, v17, v21, v20")
    A(f"v_mov_b32 v22, {YPS}")
    A("v_mad_u32_u24 v22, v17, v22, v20")
    A(f"s_lshl_b32 s56, s{sS}, 10")
    A(f"s_lshl_b32 s57, s{sW}, 7")
    A("s_add_u32 s56, s56, s57")
    A("s_add_u32 s56, s56, s97")
    A("v_lshl_add_u32 v23, v19, 4, s56")
    A(f"s_lshl_b32 s56, s{sH}, 9")
    A("s_add_u32 s56, s56, s57")
    A("s_add_u32 s56, s56, s99")
    A("v_lshl_add_u32 v24, v19, 4, s56")
    A("v_lshrrev_b32 v25, 1, v16")
    A(f"v_mul_u32_u24 v25, {YPS}, v25")
    A(f"s_mul_i32 s56, s{sW}, {2 * YPS}")
    A("v_add_u32 v25, s56, v25")
    A("v_and_b32 v26, 1, v16")
    A("v_lshl_add_u32 v25, v26, 4, v25")
    A("v_lshl_add_u32 v25, v17, 5, v25")
    A(f"v_and_b32 v26, 31, v{LANE}")
    A(f"s_lshl_b32 s57, s{sH}, 4")
    A("s_add_u32 s56, s57, s99")
    if csx:
        assert spread in (0, 3)
        A(f"s_sub_u32 s57, s95, s{sS}")
        A("s_lshl_b32 s57, s57, 14")
        A("s_add_u32 s56, s56, s57")
    A("v_lshl_add_u32 v26, v26, 9, s56")
    A("v_mov_b32 v27, s42")
    A("v_lshlrev_b32 v28, 5, v17")
    A(f"s_lshl_b32 s56, s{sS}, 3")
    A("s_mov_b64 s[60:61], 0xff")
    A("s_lshl_b64 s[60:61], s[60:61], s56")
    A("s_not_b64 s[62:63], s[60:61]")
    A(f"s_lshl_b64 s[50:51], 1, s{sH}")
    A("s_andn2_b64 s[50:51], s[52:53], s[50:51]")
    if csx:
        A("s_mov_b64 s[50:51], s[52:53]")
    A(f"v_and_b32 v29, 15, v{LANE}")
    A(f"v_mul_u32_u24 v29, {YPS}, v29")
    A(f"s_lshl_b32 s56, s{sH}, 3")
    A("v_add_u32 v29, s56, v29")
    pacing[0] = False
    STAMPX("pvstart")
    pend.append(("XO", f"global_load_dword v{XO}, v27, s[8:9]"))
    if touch_out:
        pend.append(("TO", f"global_load_dword v{XP}, v27, s[26:27]"))

    wdone = [False]

    def wblock():
        C("softmax weights of the 8 slices from the 64 per-wave records")
        A(f"s_mov_b32 s58, {SPIN_MAX}")
        need("MLG")
        LBL("L_chk1")
        A(f"v_cmp_ne_u32 vcc, s{sTA}, v{MLG + 1}")
        A(f"v_cmp_ne_u32 s[56:57], s{sTB}, v{MLG + 3}")
        A("s_or_b64 vcc, vcc, s[56:57]")
        A("s_cbranch_scc0 L_ok1")
        A("s_sub_u32 s58, s58, 1")
        A("s_cbranch_scc1 L_ok1")
        if ml_block and slm:
            A(f"s_sleep {slm}")
        A(mltext)
        A("s_waitcnt vmcnt(0)")
        A("s_branch L_chk1")
        LBL("L_ok1")
        dpp("v_max_f32", 16, MLG + 2, MLG + 2, steps[0])
        A("s_nop 1")
        row_reduce("v_max_f32", [16], steps[1:3])
        dpp("v_max_f32", 10, 16, 16, "row_ror:8")
        cross_reduce("v_max_f32", 10, 11)
        A(f"v_sub_f32 v11, v{MLG + 2}, v10")
        A("v_sub_f32 v10, v16, v10")
        A("v_mul_f32 v11, 0x3fb8aa3b, v11")
        A("v_mul_f32 v10, 0x3fb8aa3b, v10")
        A("v_exp_f32 v11, v11")
        A("v_exp_f32 v10, v10")
        A(f"v_mul_f32 v11, v11, v{MLG}")
        A("s_nop 1")
        row_reduce("v_add_f32", [11])
        cross_reduce("v_add_f32", 11, 16)
        A("v_rcp_f32 v11, v11")
        A(f"s_mov_b32 s58, {SPIN_MAX}")
        A(f"v_mul_f32 v{vWT}, v10, v11")

    def mxblock():
        C("workgroup max from the 8 wave maxima; this wave's factor")
        A(f"s_mov_b32 s58, {SPIN_MAX * 16}")
        LBL("L_mxwait")
        A(f"ds_read_b32 v16, v31 offset:{CNT + 8}")
        A(f"ds_read_b128 v[48:51], v31 offset:{MX}")
        A(f"ds_read_b128 v[52:55], v31 offset:{MX + 16}")
        A("s_waitcnt lgkmcnt(0)")
        A("v_readfirstlane_b32 s56, v16")
        A("s_cmp_eq_u32 s56, 8")
        A("s_cbranch_scc1 L_mxok")
        A("s_sub_u32 s58, s58, 1")
        A("s_cbranch_scc0 L_mxwait")
        LBL("L_mxok")
        A("v_max3_f32 v48, v48, v49, v50")
        A("v_max3_f32 v51, v51, v52, v53")
        A("v_max3_f32 v48, v48, v54, v55")
        A("v_max_f32 v48, v48, v51")
        A("v_sub_f32 v10, v14, v48")
        A("v_mul_f32 v10, 0x3fb8aa3b, v10")
        A("v_exp_f32 v30, v10")
        STAMPX("mlok")

    for t in range(16):
        while f"V{t}" not in vm:
            issue_next()
        while pend and len(vm) - max(done[0], vm.index(f"V{t}")) < win(pend[0][0]):
            issue(*pend.pop(0), window=False)
        if t == mx_at:
            mxblock()
        if pre2 and t == pre2:
            C("wave 4 reads the y lines once, long before they are written")
            A(f"s_cmp_lg_u32 s{sW}, 4")
            A("s_cbranch_scc1 L_nopre2")
            A("s_mov_b64 exec, s[50:51]")
            if fast2:
                A("v_add_u32 v56, 0x20000, v26")
                A(f"global_load_dwordx4 v[56:59], v56, s[30:31] {hpol}")
            else:
                A(f"global_load_dwordx4 v[56:59], v26, s[30:31] {hpol}")
            A("s_mov_b64 exec, -1")
            LBL("L_nopre2")
        if t == pre1:
            A("s_mov_b64 exec, s[62:63]")
            issue("PRE1", f"global_load_dwordx4 v[60:63], v{vOG}, s[30:31] {hpol}", window=False)
            A("s_mov_b64 exec, -1")
        if ml_block and not wdone[0] and "MLG" in vm and vm.index("MLG") < max(done[0] + 1, vm.index(f"V{t}")):
            assert vm.index("STML") < vm.index("MLG")
            wblock()
            wdone[0] = True
        need(f"V{t}")
        c = "0" if t == 0 else f"v[{DPV}:{DPV + 3}]"
        A(f"v_mfma_f32_16x16x32_bf16 v[{DPV}:{DPV + 3}], v[{KR + 4 * t}:{KR + 4 * t + 3}], v[{VR + 4 * t}:{VR + 4 * t + 3}], {c}")
        if t == 14:
            while pend:
                issue(*pend.pop(0), window=False)
    assert not pend and (wdone[0] or not ml_block)
    STAMPX("vland")
    A("s_mov_b64 exec, s[52:53]")
    A("s_nop 6")
    for r in range(4):
        A(f"v_mul_f32 v{DPV + r}, v30, v{DPV + r}")
    A(f"ds_write_b128 v18, v[{DPV}:{DPV + 3}] offset:{OP}")
    A("s_mov_b64 exec, -1")
    A("s_waitcnt lgkmcnt(0)")
    A("s_barrier")
    A(f"ds_read_b64 v[16:17], v21 offset:{OP}")
    A("s_waitcnt lgkmcnt(0)")
    dpp("v_add_f32", 14, 17, 17, steps[0])
    dpp("v_add_f32", 12, 16, 16, steps[0])
    A("s_nop 0")
    row_reduce("v_add_f32", [14, 12], steps[1:3])
    A("s_mov_b64 exec, s[54:55]")
    issue("STO", f"global_store_dwordx4 v23, v[12:15], s[30:31] {hpol}", window=False)
    OG = G1
    A("s_mov_b64 exec, s[62:63]")
    if first_delay:
        A(f"s_sleep {first_delay}")
    issue("OG", f"global_load_dwordx4 v[{KR}:{KR + 3}], v{vOG}, s[30:31] {hpol}", window=False)
    A("s_mov_b64 exec, -1")
    if fast2:
        A("v_add_u32 v30, 0x20000, v24")
        A("v_add_u32 v31, 0x20000, v26")
    C("own slice: taken from registers, never re-read from memory")
    A("ds_bpermute_b32 v10, v28, v12")
    A("ds_bpermute_b32 v11, v28, v14")
    STAMPX("opub")
    C("w_down part of the output projection while the hand-off is in flight")
    need("WD")
    A(f"v_mfma_f32_16x16x32_bf16 v[{DY}:{DY + 3}], v[{AH}:{AH + 3}], v[{WD}:{WD + 3}], 0")
    A("s_mov_b64 exec, s[60:61]")
    A("s_waitcnt lgkmcnt(0)")
    A(f"v_mov_b32 v{OG}, v10")
    A(f"v_mov_b32 v{OG + 2}, v11")
    A("s_mov_b64 exec, -1")
    if not ml_block:
        wblock()
    else:
        A(f"s_mov_b32 s58, {SPIN_MAX}")
    STAMPX("wts")
    poll("O", P1, KR, vOG, 62, OG, OG + 2, sl1, 1)
    STAMPX("ook")
    A(f"v_mul_f32 v10, v{vWT}, v{OG}")
    A(f"v_mul_f32 v11, v{vWT}, v{OG + 2}")
    A("s_nop 1")
    A("v_permlane32_swap_b32 v10, v11")
    A("v_add_f32 v10, v10, v11")
    cross_reduce("v_add_f32", 10, 11, swaps=("16",))
    A("s_nop 1")
    dpp("v_add_f32", 10, 10, 10, "row_ror:8")
    A("v_cvt_pk_bf16_f32 v10, v10, v10")
    A("s_nop 1")
    for k in range(2):
        for b4 in range(2):
            for b in range(2):
                p = 4 * b4 + 2 * b + k
                A(f"v_mov_b32_dpp v{16 + k}, v10 row_newbcast:{p} row_mask:{(0x5, 0xa)[b4]:#x} bank_mask:{(0x3, 0xc)[b]:#x}")
    for k in range(2):
        for r in range(4):
            A(f"v_and_b32 v{48 + 4 * k + r}, v{16 + k}, v{ME[r]}")
    A("s_nop 0")
    A(f"v_mfma_f32_16x16x32_bf16 v[{DY}:{DY + 3}], v[48:51], v[{WO0}:{WO0 + 3}], v[{DY}:{DY + 3}]")
    A(f"v_mfma_f32_16x16x32_bf16 v[{DY}:{DY + 3}], v[52:55], v[{WO1}:{WO1 + 3}], v[{DY}:{DY + 3}]")
    A("s_mov_b64 exec, s[40:41]")
    A("s_nop 6")
    A(f"ds_write_b128 v25, v[{DY}:{DY + 3}] offset:{YP}")
    A("s_mov_b64 exec, -1")
    A("s_waitcnt lgkmcnt(0)")
    A("s_barrier")
    A(f"s_cmp_ge_u32 s{sW}, 4")
    A("s_cbranch_scc1 L_final")
    A(f"ds_read_b64 v[16:17], v22 offset:{YP}")
    A(f"ds_read_b64 v[18:19], v22 offset:{YP + 8 * YPS}")
    A("s_waitcnt lgkmcnt(0)")
    A("v_add_f32 v14, v17, v19")
    A("v_add_f32 v12, v16, v18")
    A("s_nop 0")
    row_reduce("v_add_f32", [14, 12], steps[:3])
    A("s_mov_b64 exec, s[54:55]")
    if fast2:
        C("copy A: plain store (seen through the shared L2 by a reader on the same die); copy B: write-through")
        A("global_store_dwordx4 v30, v[12:15], s[30:31]")
    A(f"global_store_dwordx4 v24, v[12:15], s[30:31] {hpol}")
    if stamps:
        A("s_mov_b64 exec, -1")
        STAMPX("end")
        A("s_branch L_stamps")
    else:
        A("s_endpgm")
    LBL("L_final")
    A(f"s_cmp_lg_u32 s{sW}, 4")
    if stamps:
        STAMPX("end")
        A("s_cbranch_scc1 L_stamps")
    else:
        A("s_cbranch_scc1 L_end")
    A(f"s_mov_b32 s58, {SPIN_MAX}")
    C("own workgroup's piece straight from LDS (lanes 32..47), zero elsewhere")
    if not csx:
        A(f"ds_read_b64 v[20:21], v29 offset:{YP}")
    A("v_mov_b32 v16, 0")
    A("v_mov_b32 v18, 0")
    if not csx:
        A("s_mov_b32 exec_lo, 0")
        A("s_mov_b32 exec_hi, 0xffff")
        A("s_waitcnt lgkmcnt(0)")
        A("v_mov_b32 v16, v20")
        A("v_mov_b32 v18, v21")
    if fd2:
        A(f"s_sleep {fd2}")
    if fast2:
        A(f"s_mov_b32 s58, {nfast}")
        poll("YA", P2, KR + 32, 31, 50, 16, 18, sl2, 0, fall=True)
        A(f"s_mov_b32 s58, {SPIN_MAX}")
    poll("Y", P2, KR + 32, 26, 50, 16, 18, sl2, 0)
    A("s_nop 0")
    A("v_permlane32_swap_b32 v16, v18")
    A("v_add_f32 v16, v16, v18")
    A(f"v_lshlrev_b32 v10, 16, v{XO}")
    A(f"v_and_b32 v11, 0xffff0000, v{XO}")
    row_reduce("v_add_f32", [16])
    cross_reduce("v_add_f32", 16, 17, swaps=("16",))
    A("s_nop 0")
    A("v_readlane_b32 s56, v16, 32")
    A("v_add_f32 v10, v10, v16")
    A("s_nop 0")
    A("v_add_f32 v11, s56, v11")
    A("v_cvt_pk_bf16_f32 v10, v10, v11")
    A("s_mov_b64 exec, 1")
    A(f"global_store_dword v27, v10, s[26:27] {opol}")
    A("s_cmp_lg_u32 s2, 0")
    A("s_cbranch_scc1 L_nowbump")
    A(f"v_mov_b32 v12, {W_OFF}")
    A(f"global_store_dword v12, v13, s[30:31] {hpol}")
    LBL("L_nowbump")
    if stamps:
        A("s_mov_b64 exec, -1")
        STAMPX("end")
        LBL("L_stamps")
        ns = len(stamp_idx)
        nq = (ns + 1) // 2
        A("s_waitcnt lgkmcnt(0)")
        A("s_lshl_b32 s56, s2, 3")
        A(f"s_add_u32 s56, s56, s{sW}")
        A(f"s_mul_i32 s56, s56, {nq * 16}")
        A(f"s_add_u32 s56, s56, {STAMP:#x}")
        A("v_mov_b32 v10, s56")
        A("s_mov_b64 exec, 1")
        for q in range(nq):
            for j in range(4):
                k = 4 * q + j
                if k >= 2 * ns:
                    k -= 2
                A(f"v_mov_b32 v{12 + j}, s{64 + k}")
            A(f"global_store_dwordx4 v10, v[12:15], s[30:31] offset:{q * 16}")
            A("s_nop 2")
        print("stamps per wave:", nq * 2, list(stamp_idx), file=sys.stderr)
    LBL("L_end")
    A("s_endpgm")
    L.append('.section .rodata,"a"')
    L.append(".p2align 6")
    L.append(f".amdhsa_kernel {NAME}_kernel")
    L.append("  .amdhsa_next_free_vgpr 256")
    L.append("  .amdhsa_next_free_sgpr 102")
    L.append("  .amdhsa_accum_offset 256")
    L.append("  .amdhsa_group_segment_fixed_size 0")
    L.append("  .amdhsa_kernarg_size 96")
    L.append("  .amdhsa_user_sgpr_count 2")
    L.append("  .amdhsa_user_sgpr_kernarg_segment_ptr 1")
    L.append("  .amdhsa_system_sgpr_workgroup_id_x 1")
    L.append("  .amdhsa_float_denorm_mode_32 3")
    L.append(".end_amdhsa_kernel")
    return "\n".join(L) + "\n"


if __name__ == "__main__":
    out = sys.argv[1]
    kw = {}
    for a in sys.argv[2:]:
        k, v = a.split("=")
        try:
            v = int(v)
        except ValueError:
            pass
        kw[k] = v
    open(out, "w").write(gen(**kw))
```

```python
import sys
from gen import NAME, HEADER

W_OFF = 0
REC0 = 0x40000
MLR = 0x180000
OREC = 0x100000
YREC = 0x1A0000
XR, XM, XO_, XY = 0xC0000, 0x8000, 0x40000, 0x60000
STAMP = 512 << 20
P0P = 0
QF = 8192
CNT = 9216
MX = 9248
OP = 9472
OPS = 544
YP = OP + 8 * OPS
YPS = 288
LDS_BYTES = YP + 16 * YPS

C_TAG = 0x9E3779B9
C_TAGB = 0x5BD1E995
SPIN_MAX = 1 << 18
ALL_STAMPS = ["entry", "kernarg", "x", "p0w", "bar1", "gissue", "gok", "qok", "stml", "pvstart", "mlok", "vland", "opub", "wts", "ook", "end"]


def gen(pol="nt", stamps="", rot=0, D=5, g_after=11, ml_after=11, w_after=15, k_pre=2, prio=0, hpol="sc1", chunk=36, p0pol=None, wpol=None, qdelay=4, touch_out=0, sl1=4, sl2=2, sl0=0, first_delay=0, mx_at=11, P1=3, P2=3, fd2=0, pre2=0, opol="", DV=None, DL=None, last_n=8, prios="", boost=0, DW=None, pn=16, spread=0, ml_block=0, slm=4, tlb=0, pre1=-1, csx=0, fast2=0, nfast=64, local=0, fperm=0, funit=0, sb=0, w_tail=0, p0map=0, chunk1=None):
    L = []
    p0pol = pol if p0pol is None else p0pol
    wpol = pol if wpol is None else wpol
    stamps = ALL_STAMPS if stamps == "all" else [s for s in stamps.split(",") if s]

    vm = []
    done = [0]
    pend = []
    cnt = [0]
    pacing = [False]

    def RAW(s):
        L.append("    " + s)

    def A(s):
        RAW(s)
        if pacing[0]:
            cnt[0] += 1
            if cnt[0] >= curchunk[0] and pend and not nopace[0]:
                issue_next()

    nopace = [False]
    curchunk = [chunk if chunk1 is None else chunk1]

    def C(s):
        L.append("    ; " + s)

    def LBL(s):
        L.append(s + ":")

    def need(name):
        i = vm.index(name)
        if i >= done[0]:
            RAW(f"s_waitcnt vmcnt({len(vm) - 1 - i})")
            done[0] = i + 1

    DV = D if DV is None else DV
    DL = DV if DL is None else DL
    priomap = dict(x.split(":") for x in prios.split(",") if x)

    def win(name):
        if name[0] == "K" or name == "G":
            return D
        if name[0] == "V" and int(name[1:]) < 16 - last_n:
            return DV
        if name[0] != "V" and name != "MLG" and DW is not None:
            return DW
        return DL

    SPECIAL = ("G", "STML", "STMLA", "MLG", "PRE1")

    def wineff(name):
        d = win(name)
        k = d
        while True:
            ns = sum(1 for o in vm[max(done[0], len(vm) - k):] if o in SPECIAL)
            if d + sb * ns <= k:
                return k
            k = d + sb * ns

    def issue(name, text, window=True):
        d = wineff(name)
        if window and len(vm) - done[0] >= d:
            n = d - 1
            RAW(f"s_waitcnt vmcnt({n})")
            done[0] = len(vm) - n
        RAW(text)
        vm.append(name)
        cnt[0] = 0
        if name in priomap:
            RAW(f"s_setprio {priomap[name]}")
        STAMPX("i" + name)

    def issue_next():
        name, text = pend.pop(0)
        issue(name, text)

    stamp_idx = {}
    SB = 64

    def STAMPX(tag):
        if tag in stamps:
            i = stamp_idx.setdefault(tag, len(stamp_idx))
            RAW(f"s_memrealtime s[{SB + 2 * i}:{SB + 1 + 2 * i}]")

    def dpp(op, d, s0, s1, ctrl, rm=0xF, bm=0xF):
        A(f"{op}_dpp v{d}, v{s0}, v{s1} {ctrl} row_mask:{rm:#x} bank_mask:{bm:#x}")

    steps = ["quad_perm:[1,0,3,2]", "quad_perm:[2,3,0,1]", "row_half_mirror", "row_mirror"]

    def row_reduce(op, regs, st=steps):
        for s in st:
            for r in regs:
                dpp(op, r, r, r, s)
            if len(regs) < 3:
                A(f"s_nop {2 - len(regs)}")

    def cross_reduce(op, r, t, swaps=("16", "32")):
        for sw in swaps:
            A(f"v_mov_b32 v{t}, v{r}")
            A("s_nop 1")
            A(f"v_permlane{sw}_swap_b32 v{t}, v{r}")
            A(f"{op} v{r}, v{t}, v{r}")

    def poll(tag, P, base, vaddr, spend, f0, f1, sleep, pre_issued, fall=False):
        ld = lambda j: f"global_load_dwordx4 v[{base + 4 * j}:{base + 4 * j + 3}], v{vaddr}, s[30:31] {hpol}"
        A(f"s_mov_b64 exec, s[{spend}:{spend + 1}]")
        for j in range(pre_issued, P - 1):
            A(ld(j))
            if sleep:
                A(f"s_sleep {sleep}")
        if P == 1 and pre_issued:
            A(f"s_branch L_skip{tag}")
        LBL(f"L_poll{tag}")
        for j in range(P):
            A(ld((j + P - 1) % P))
            if P == 1 and pre_issued:
                LBL(f"L_skip{tag}")
            A(f"s_waitcnt vmcnt({P - 1})")
            A(f"v_cmp_eq_u32 vcc, s{sTA}, v{base + 4 * j + 1}")
            A(f"v_cmp_eq_u32 s[56:57], s{sTB}, v{base + 4 * j + 3}")
            A("s_and_b64 exec, vcc, s[56:57]")
            A(f"v_mov_b32 v{f0}, v{base + 4 * j}")
            A(f"v_mov_b32 v{f1}, v{base + 4 * j + 2}")
            A(f"s_andn2_b64 s[{spend}:{spend + 1}], s[{spend}:{spend + 1}], exec")
            A(f"s_cbranch_scc0 L_done{tag[0]}")
            A(f"s_mov_b64 exec, s[{spend}:{spend + 1}]")
            if sleep:
                A(f"s_sleep {sleep}")
        A("s_sub_u32 s58, s58, 1")
        A(f"s_cbranch_scc0 L_poll{tag}")
        if fall:
            return
        LBL(f"L_done{tag}")
        A("s_mov_b64 exec, -1")

    L.append(HEADER + f"; @launch grid=(256,1,1) block=(512,1,1) lds={LDS_BYTES}")
    L.append('.amdgcn_target "amdgcn-amd-amdhsa--gfx950"')
    L.append(".text")
    L.append(f".globl {NAME}_kernel")
    L.append(".p2align 8")
    L.append(f".type {NAME}_kernel,@function")
    L.append(f"{NAME}_kernel:")

    LANE = 1
    ME = [2, 3, 4, 5]
    Q = [6, 7, 8, 9]
    KOFF = list(range(32, 48))
    AT = list(range(48, 64))
    KR, VR = 64, 128
    X, XP, XO = 192, 196, 197
    WQA, WQB, WGA, WGB = 200, 204, 208, 212
    G0, G1 = 216, 220
    WO0, WO1, WD = 224, 228, 232
    AH, DPV, DY = 236, 240, 244
    vWO, vWD, vOG, vMLG, vG, vWT, vR = 248, 249, 250, 251, 252, 253, 254
    sH, sS, sW = 3, 4, 5
    sTA, sTB = 33, 34

    def kload(t):
        return (f"K{t}", f"global_load_dwordx4 v[{KR + 4 * t}:{KR + 4 * t + 3}], v{KOFF[t]}, s[10:11] {pol}")

    def vload(t):
        return (f"V{t}", f"global_load_dwordx4 v[{VR + 4 * t}:{VR + 4 * t + 3}], v{KOFF[t]}, s[12:13] {pol}")

    gtext = f"global_load_dwordx4 v[{G0}:{G0 + 3}], v{vG}, s[30:31] {hpol}"
    wl = [("WD", f"global_load_dwordx4 v[{WD}:{WD + 3}], v{vWD}, s[24:25] {wpol}"),
          ("WO0", f"global_load_dwordx4 v[{WO0}:{WO0 + 3}], v{vWO}, s[16:17] {wpol}"),
          ("WO1", f"global_load_dwordx4 v[{WO1}:{WO1 + 3}], v{vWO}, s[16:17] offset:2048 {wpol}")]

    STAMPX("entry")
    A("s_cmp_ge_u32 s2, 256")
    A("s_cbranch_scc1 L_end")
    A("s_load_dwordx16 s[8:23], s[0:1], 0")
    A("s_load_dwordx8 s[24:31], s[0:1], 64")
    if prio or prios:
        A("s_setprio 3")
    A("v_lshrrev_b32 v10, 6, v0")
    A(f"v_and_b32 v{LANE}, 63, v0")
    if local == 0:
        A(f"s_lshr_b32 s{sH}, s2, 3")
        A(f"v_readfirstlane_b32 s{sW}, v10")
        A(f"s_and_b32 s{sS}, s2, 7")
        A(f"s_add_u32 s94, s{sH}, {fperm}")
        A("s_and_b32 s94, s94, 31")
    else:
        C("x = b&7, jj = (b>>3)&3, s = b>>5; FFN slot s94 = 4x + jj")
        A("s_and_b32 s6, s2, 7")
        A(f"v_readfirstlane_b32 s{sW}, v10")
        A("s_bfe_u32 s7, s2, 0x20003")
        A(f"s_lshr_b32 s{sS}, s2, 5")
        A("s_lshl2_add_u32 s94, s6, s7")
        if local == 1:
            A("s_bfe_u32 s35, s2, 0x10003")
            A(f"s_lshl1_add_u32 s{sH}, s6, s35")
            A("s_and_b32 s35, s2, 16")
            A(f"s_or_b32 s{sH}, s{sH}, s35")
        else:
            A(f"s_and_b32 s{sH}, s2, 31")
    C("lane fields: v11 = g, v12 = i, v13 = b, v14 = e")
    A(f"v_lshrrev_b32 v11, 4, v{LANE}")
    A(f"v_and_b32 v12, 15, v{LANE}")
    A(f"v_bfe_u32 v13, v{LANE}, 3, 1")
    A(f"v_and_b32 v14, 7, v{LANE}")
    C("s = 4*ch + rb ; s6 = 128 rb + 16 w = first weight row of this wave")
    A(f"s_and_b32 s6, s{sS}, 3")
    A("s_lshl_b32 s6, s6, 7")
    A(f"s_lshl_b32 s7, s{sW}, 4")
    A("s_add_u32 s6, s6, s7")
    if p0map:
        C("phase-0 job of this workgroup: head s92 = (h & ~1) | (s >> 2), column half / matrix ch = h & 1")
        A(f"s_lshr_b32 s92, s{sS}, 2")
        A(f"s_and_b32 s35, s{sH}, 30")
        A("s_or_b32 s92, s92, s35")
        A(f"s_and_b32 s35, s{sH}, 1")
    else:
        A(f"s_mov_b32 s92, s{sH}")
        A(f"s_lshr_b32 s35, s{sS}, 2")
    A("v_lshl_add_u32 v15, v11, 2, s6")
    A("v_lshl_add_u32 v21, v13, 1, v15")
    A("v_xor_b32 v23, 1, v13")
    A("v_lshl_add_u32 v23, v23, 1, v15")
    A(f"v_lshlrev_b32 v16, 4, v{LANE}")
    A("v_lshlrev_b32 v17, 1, v21")
    C("wq offset: row*8192 + 256h + 128ch + 16e")
    A("s_lshl_b32 s43, s92, 8")
    A("s_lshl_b32 s42, s35, 7")
    A("s_add_u32 s43, s43, s42")
    A("v_lshl_add_u32 v19, v14, 4, s43")
    A("v_lshl_add_u32 v19, v21, 13, v19")
    A("v_add_u32 v20, 0x2000, v19")
    C("gate/up offset")
    if not funit:
        assert not (p0map and (fperm or local))
        A("s_mul_i32 s44, s92, 43") if p0map else A("s_mul_i32 s44, s94, 43")
        A("s_and_b32 s45, s44, 7")
        A("s_andn2_b32 s46, s44, 7")
        A("s_lshl_b32 s46, s46, 1")
        A("s_add_u32 s47, s45, 42")
        A("s_lshr_b32 s47, s47, 3")
        A("s_mov_b32 s93, 42")
    else:
        C("hidden units of this group: slots 0..10 own 64, slots 11..31 own 32 (43 blocks of 32)")
        A("s_lshl_b32 s44, s94, 6")
        A("s_lshl_b32 s45, s94, 5")
        A("s_add_u32 s45, s45, 352")
        A("s_cmp_lt_u32 s94, 11")
        A("s_cselect_b32 s44, s44, s45")
        A("s_cselect_b32 s47, 7, 3")
        A("s_cselect_b32 s93, 63, 31")
        A("s_mov_b32 s45, 0")
        A("s_lshl_b32 s46, s44, 1")
    A("v_min_u32 v22, s47, v14")
    A("v_lshl_add_u32 v22, v22, 4, s46")
    A("s_movk_i32 s48, 2752")
    A("v_mad_u32_u24 v22, v23, s48, v22")
    C("K/V offsets")
    A(f"s_lshl_b32 s49, s{sH}, 23")
    A(f"s_mul_i32 s50, s{sS}, {pn * 8192}")
    A("s_add_u32 s49, s49, s50")
    A(f"s_add_u32 s49, s49, {28672 * 256}")
    A(f"v_lshl_add_u32 v{KOFF[0]}, v0, 4, s49")

    def koffs(lo, hi):
        for t in range(lo, hi):
            if rot == 0:
                if t:
                    A(f"v_add_u32 v{KOFF[t]}, {(t // pn) * 8 * pn * 8192 + (t % pn) * 8192:#x}, v{KOFF[0]}")
            else:
                A(f"s_add_u32 s51, s50, {t}")
                A("s_and_b32 s51, s51, 15")
                A("s_lshl_b32 s51, s51, 13")
                A(f"v_add_u32 v{KOFF[t]}, s51, v28")
    if rot:
        A(f"v_mov_b32 v28, v{KOFF[0]}")
        A(f"s_mul_i32 s50, s{sH}, {rot}")
    koffs(0, 16)
    A("v_mov_b32 v24, 0")
    A("v_mov_b32 v25, 0")
    A("v_mov_b32 v26, 0")
    A("v_mov_b32 v27, 0")
    A(f"ds_write_b128 v24, v[24:27] offset:{CNT}")
    A("s_cmp_eq_u32 s35, 0")
    A("s_waitcnt lgkmcnt(0)")
    STAMPX("kernarg")
    issue("X", f"global_load_dwordx4 v[{X}:{X + 3}], v16, s[8:9]", False)
    issue("XP", f"global_load_dword v{XP}, v17, s[8:9]", False)
    A("s_cselect_b32 s20, s20, s22")
    A("s_cselect_b32 s21, s21, s23")
    issue("WQA", f"global_load_dwordx4 v[{WQA}:{WQA + 3}], v19, s[14:15] {p0pol}", False)
    issue("WQB", f"global_load_dwordx4 v[{WQB}:{WQB + 3}], v20, s[14:15] {p0pol}", False)
    issue("WGA", f"global_load_dwordx4 v[{WGA}:{WGA + 3}], v22, s[20:21] {p0pol}", False)
    issue("WGB", f"global_load_dwordx4 v[{WGB}:{WGB + 3}], v22, s[20:21] offset:2752 {p0pol}", False)
    A(f"s_load_dword s32, s[30:31], {W_OFF}")
    if tlb:
        C("touch the pages used later (address translation is then warm): wave 0,5.. V, 1 wo, 2 w_down, 3 ws, 4 out")
        A("s_mov_b64 s[56:57], s[12:13]")
        A("s_mov_b32 s58, s49")
        A(f"s_lshl_b32 s59, s{sH}, 17")
        A(f"s_cmp_eq_u32 s{sW}, 1")
        A("s_cselect_b64 s[56:57], s[16:17], s[56:57]")
        A("s_cselect_b32 s58, s59, s58")
        A("s_lshl_b32 s59, s44, 10")
        A(f"s_cmp_eq_u32 s{sW}, 2")
        A("s_cselect_b64 s[56:57], s[24:25], s[56:57]")
        A("s_cselect_b32 s58, s59, s58")
        A(f"s_bfe_u32 s59, s{sH}, 0x10003")
        A("s_lshl_b32 s59, s59, 23")
        A(f"s_add_u32 s59, s59, {0x7000 if spread else 0x8000}") if spread else A("s_mov_b32 s59, 0x8000")
        A(f"s_cmp_eq_u32 s{sW}, 3")
        A("s_cselect_b64 s[56:57], s[30:31], s[56:57]")
        A("s_cselect_b32 s58, s59, s58")
        A(f"s_cmp_eq_u32 s{sW}, 4")
        A("s_cselect_b64 s[56:57], s[26:27], s[56:57]")
        A("s_cselect_b32 s58, 0, s58")
        A("v_mov_b32 v24, s58")
        issue("TLB", f"global_load_dword v255, v24, s[56:57] {pol}", False)
    A("s_barrier")
    if prio:
        A("s_setprio 0")
    for t in range(k_pre):
        issue(*kload(t), window=False)
    if p0map:
        A("s_mul_i32 s44, s94, 43")
        A("s_and_b32 s45, s44, 7")
    C("lane masks")
    A("s_mov_b32 s36, 0xcccccccc")
    A("s_mov_b32 s37, 0xcccccccc")
    A("s_mov_b32 s38, 0xaaaaaaaa")
    A("s_mov_b32 s39, 0xaaaaaaaa")
    A("s_mov_b32 s40, 0x00ff00ff")
    A("s_mov_b32 s41, 0xff00ff00")
    A("s_mov_b32 s52, -1")
    A("s_mov_b32 s53, 0")
    A("s_mov_b32 s54, 0x01010101")
    A("s_mov_b32 s55, 0x01010101")
    A(f"v_and_b32 v24, 1, v{LANE}")
    A("v_lshlrev_b32 v24, 4, v24")
    A("v_mov_b32 v25, 0xffff")
    A("v_lshlrev_b32 v24, v24, v25")
    for r in range(4):
        m = (0x03030303 << (2 * r)) & 0xFFFFFFFF
        A(f"s_mov_b32 s56, {m:#x}")
        A(f"s_mov_b32 s57, {m:#x}")
        A(f"v_cndmask_b32 v{ME[r]}, 0, v24, s[56:57]")
    C("output byte offset 128 cs + 4 h")
    A(f"s_xor_b32 s95, s{sS}, {csx}")
    A("s_lshl_b32 s42, s95, 7")
    A(f"s_lshl_b32 s43, s{sH}, 2")
    A("s_add_u32 s42, s42, s43")
    C("wo offset: (128h + 16w + 8(g&1) + 4b + (g>>1))*1024 + 128s + 16e")
    A("v_and_b32 v24, 1, v11")
    A("v_lshlrev_b32 v24, 3, v24")
    A("v_lshl_add_u32 v24, v13, 2, v24")
    A("v_lshrrev_b32 v25, 1, v11")
    A("v_add_u32 v24, v24, v25")
    A(f"s_lshl_b32 s56, s{sH}, 7")
    A("s_add_u32 s56, s56, s7")
    A("v_add_u32 v24, s56, v24")
    A(f"s_lshl_b32 s57, s{sS}, 7")
    A("v_lshl_add_u32 v25, v14, 4, s57")
    A(f"v_lshl_add_u32 v{vWO}, v24, 10, v25")
    C("w_down: r = 8w + 2g + b ; row = 43h + min(r,42)")
    A("v_lshl_add_u32 v24, v11, 1, v13")
    A(f"s_lshl_b32 s56, s{sW}, 3")
    A(f"v_add_u32 v{vR}, s56, v24")
    A(f"v_min_u32 v24, s93, v{vR}")
    A("v_add_u32 v26, s44, v24")
    A(f"v_lshl_add_u32 v{vWD}, v26, 10, v25")
    A("v_add_u32 v24, s45, v24")
    A("v_lshlrev_b32 v31, 2, v24")
    C("hand-off record bases: s96 rec0(h), s97 orec(h), s98 ml(h), s99 yrec(cs)")
    if True:
        A(f"s_lshl_b32 s56, s{sH}, 13")
        A(f"s_add_u32 s96, s56, {REC0:#x}")
        A(f"s_add_u32 s97, s56, {OREC:#x}")
        A(f"s_lshl_b32 s56, s{sH}, 10")
        A(f"s_add_u32 s98, s56, {MLR:#x}")
        A(f"s_lshl_b32 s56, s{sS}, 14")
        A(f"s_add_u32 s99, s56, {YREC:#x}")
    C("gather offsets")
    A(f"v_lshrrev_b32 v24, 3, v{LANE}")
    A(f"s_lshl_b32 s57, s{sW}, 7")
    A("v_lshlrev_b32 v25, 10, v24")
    A("v_lshl_add_u32 v25, v14, 4, v25")
    A("v_add_u32 v25, s57, v25")
    A(f"v_add_u32 v{vG}, s96, v25")
    A(f"v_add_u32 v{vOG}, s97, v25")
    A(f"v_lshl_add_u32 v{vMLG}, v{LANE}, 4, s98")
    if local:
        A(f"v_xor_b32 v{vG}, {XR:#x}, v{vG}")
        A(f"v_xor_b32 v{vOG}, {XO_:#x}, v{vOG}")
        A(f"v_xor_b32 v{vMLG}, {XM:#x}, v{vMLG}")
    C("LDS write address of the phase-0 partials")
    A("v_lshrrev_b32 v24, 1, v11")
    A(f"s_lshl_b32 s56, s{sW}, 10")
    A("v_lshl_add_u32 v25, v24, 9, s56")
    A("v_and_b32 v26, 1, v11")
    A("v_lshl_add_u32 v25, v26, 4, v25")
    A("v_lshl_add_u32 v30, v14, 5, v25")
    A("v_xor_b32 v26, v24, v13")
    A("v_lshl_add_u32 v30, v26, 8, v30")
    C("LDS write address of the gathered q/gate/up value")
    A(f"v_bfe_u32 v24, v{LANE}, 4, 1")
    A("v_lshl_add_u32 v24, v14, 1, v24")
    A(f"v_lshrrev_b32 v25, 5, v{LANE}")
    A("v_lshl_add_u32 v24, v25, 6, v24")
    A(f"s_lshr_b32 s56, s{sW}, 2")
    A("s_lshl_b32 s56, s56, 6")
    A("s_add_u32 s56, s56, s7")
    A("v_add_lshl_u32 v29, v24, s56, 2")

    pend.extend(kload(t) for t in range(k_pre, 16))
    pend.insert(g_after + 1 - k_pre, ("G", gtext))
    pend.extend(vload(t) for t in range(16))
    for i, w in enumerate(wl):
        if not w_tail:
            pend.insert([n for n, _ in pend].index(f"V{w_after}") + 1 + i, w)
    MLG = G0
    mltext = f"global_load_dwordx4 v[{MLG}:{MLG + 3}], v{vMLG}, s[30:31] {hpol}"
    pend.insert([n for n, _ in pend].index(f"V{ml_after}") + 1, ("MLG", mltext))
    C("layernorm")
    need("XP")
    STAMPX("x")
    for k in range(4):
        A(f"v_lshlrev_b32 v{10 + 2 * k}, 16, v{X + k}")
        A(f"v_and_b32 v{11 + 2 * k}, 0xffff0000, v{X + k}")
    A("v_add_f32 v18, v10, v11")
    A("v_add_f32 v19, v12, v13")
    A("v_add_f32 v20, v14, v15")
    A("v_add_f32 v21, v16, v17")
    A("v_add_f32 v18, v18, v19")
    A("v_add_f32 v20, v20, v21")
    A("v_add_f32 v18, v18, v20")
    A("s_nop 1")
    row_reduce("v_add_f32", [18])
    cross_reduce("v_add_f32", 18, 19)
    A("v_mul_f32 v18, 0x3b000000, v18")
    for k in range(8):
        A(f"v_sub_f32 v{10 + k}, v{10 + k}, v18")
    A("v_mul_f32 v19, v10, v10")
    A("v_mul_f32 v20, v11, v11")
    for k in range(2, 8, 2):
        A(f"v_fmac_f32 v19, v{10 + k}, v{10 + k}")
        A(f"v_fmac_f32 v20, v{11 + k}, v{11 + k}")
    A("v_add_f32 v19, v19, v20")
    A("s_nop 1")
    row_reduce("v_add_f32", [19])
    cross_reduce("v_add_f32", 19, 20)
    A("v_mul_f32 v19, 0x3b000000, v19")
    A("v_cvt_pk_bf16_f32 v20, v18, v19")
    A("v_lshlrev_b32 v18, 16, v20")
    A("v_and_b32 v19, 0xffff0000, v20")
    A("v_add_f32 v19, 0x3727c5ac, v19")
    A("v_cvt_pk_bf16_f32 v19, v19, v19")
    A("v_lshlrev_b32 v19, 16, v19")
    A("v_sqrt_f32 v19, v19")
    A(f"v_lshlrev_b32 v21, 16, v{XP}")
    A(f"v_and_b32 v22, 0xffff0000, v{XP}")
    A("v_cvt_pk_bf16_f32 v19, v19, v19")
    A("v_lshlrev_b32 v19, 16, v19")
    A("v_rcp_f32 v20, v19")
    A("v_sub_f32 v21, v21, v18")
    A("v_sub_f32 v22, v22, v18")
    A("v_cvt_pk_bf16_f32 v21, v21, v22")
    A("v_and_b32 v22, 0xffff0000, v21")
    A("v_lshlrev_b32 v21, 16, v21")
    A("v_mul_f32 v10, v21, v20")
    A("v_mul_f32 v11, v22, v20")
    A("v_fma_f32 v12, -v10, v19, v21")
    A("v_fma_f32 v13, -v11, v19, v22")
    A("v_fmac_f32 v10, v12, v20")
    A("v_fmac_f32 v11, v13, v20")
    A("v_cvt_pk_bf16_f32 v10, v10, v10")
    A("v_cvt_pk_bf16_f32 v11, v11, v11")
    for r in range(4):
        A(f"v_and_b32 v{20 + r}, v10, v{ME[r]}")
    for r in range(4):
        A(f"v_and_b32 v{24 + r}, v11, v{ME[r]}")
    need("WGB")
    STAMPX("p0w")
    DQ, DG = 48, 52
    A(f"v_mfma_f32_16x16x32_bf16 v[{DQ}:{DQ + 3}], v[20:23], v[{WQA}:{WQA + 3}], 0")
    A(f"v_mfma_f32_16x16x32_bf16 v[{DG}:{DG + 3}], v[20:23], v[{WGA}:{WGA + 3}], 0")
    A(f"v_mfma_f32_16x16x32_bf16 v[{DQ}:{DQ + 3}], v[24:27], v[{WQB}:{WQB + 3}], v[{DQ}:{DQ + 3}]")
    A(f"v_mfma_f32_16x16x32_bf16 v[{DG}:{DG + 3}], v[24:27], v[{WGB}:{WGB + 3}], v[{DG}:{DG + 3}]")
    nfill = 0
    while len(vm) - done[0] < D and pend[0][0] != "G":
        issue_next()
        nfill += 1
    A(f"s_nop {max(0, 7 - nfill)}")
    for r in range(4):
        A(f"v_cndmask_b32 v{DQ + r}, v{DG + r}, v{DQ + r}, s[40:41]")
    A(f"ds_write_b128 v30, v[{DQ}:{DQ + 3}] offset:{P0P}")
    A("v_mov_b32 v28, 0")
    A("v_mov_b32 v27, 1")
    A("s_mov_b64 exec, 1")
    A(f"ds_add_rtn_u32 v10, v28, v27 offset:{CNT}")
    A("s_mov_b64 exec, -1")
    A("s_waitcnt lgkmcnt(0)")
    A("v_readfirstlane_b32 s56, v10")
    A(f"s_add_u32 s{sTA}, s32, {C_TAG:#x}")
    A(f"s_xor_b32 s{sTB}, s{sTA}, {C_TAGB:#x}")
    STAMPX("bar1")
    A("s_cmp_lg_u32 s56, 7")
    A("s_cbranch_scc1 L_nopub0")
    C("the wave that arrived last sums the 16 partials and publishes 64 pieces")
    for name, text in pend[:boost]:
        RAW(text)
    A(f"v_lshlrev_b32 v10, 3, v{LANE}")
    B0 = 192
    for p in range(16):
        A(f"ds_read_b64 v[{B0 + 2 * p}:{B0 + 2 * p + 1}], v10 offset:{P0P + p * 512}")
    if p0map:
        A(f"s_and_b32 s56, s{sS}, 3")
        A("s_lshl2_add_u32 s56, s35, s56")
        A("s_lshl3_add_u32 s56, s92, s56")
        A("s_lshl_b32 s56, s56, 10")
        A(f"s_add_u32 s56, s56, {REC0:#x}")
    else:
        A(f"s_lshl_b32 s56, s{sS}, 10")
        A("s_add_u32 s56, s56, s96")
    A(f"v_lshl_add_u32 v11, v{LANE}, 4, s56")
    A(f"v_mov_b32 v13, s{sTA}")
    A(f"v_mov_b32 v15, s{sTB}")
    if local:
        A(f"v_xor_b32 v10, {XR:#x}, v11")
    A("s_waitcnt lgkmcnt(0)")
    n = 16
    while n > 1:
        n //= 2
        for p in range(n):
            for c in range(2):
                dst = B0 + 2 * p + c if n > 1 else 12 + 2 * c
                A(f"v_add_f32 v{dst}, v{B0 + 2 * p + c}, v{B0 + 2 * (p + n) + c}")
    if local:
        A("global_store_dwordx4 v10, v[12:15], s[30:31]")
    A(f"global_store_dwordx4 v11, v[12:15], s[30:31] {hpol}")
    C("(this store is one extra vm op in wave 0 only: every later counted wait only gets stricter for it)")
    if boost:
        A("s_branch L_join0")
    LBL("L_nopub0")
    if boost:
        d0 = done[0]
        for _ in range(boost):
            issue_next()
        done[0] = d0
        LBL("L_join0")
    while pend[0][0] != "G":
        issue_next()
    issue_next()
    STAMPX("gissue")
    while len(vm) - 1 - vm.index("G") < D - 1 + sb:
        issue_next()
    A(f"s_mov_b32 s58, {SPIN_MAX}")
    need("G")
    LBL("L_chk0")
    A(f"v_cmp_ne_u32 vcc, s{sTA}, v{G0 + 1}")
    A(f"v_cmp_ne_u32 s[56:57], s{sTB}, v{G0 + 3}")
    A("s_or_b64 vcc, vcc, s[56:57]")
    A("s_cbranch_scc0 L_ok0")
    A("s_sub_u32 s58, s58, 1")
    A("s_cbranch_scc1 L_ok0")
    if local:
        A(f"v_xor_b32 v{vG}, {XR:#x}, v{vG}")
        A("s_mov_b64 exec, vcc")
    A(gtext)
    A("s_waitcnt vmcnt(0)")
    A("s_branch L_chk0")
    LBL("L_ok0")
    if local:
        A("s_mov_b64 exec, -1")
    STAMPX("gok")
    C("sum over the 4 row blocks (lane bits 4,3); lane bit 5 = column half / matrix")
    A(f"v_permlane16_swap_b32 v{G0}, v{G0 + 2}")
    A(f"v_add_f32 v10, v{G0}, v{G0 + 2}")
    A(f"v_and_b32 v12, 15, v{LANE}")
    A("v_lshlrev_b32 v12, 5, v12")
    dpp("v_add_f32", 10, 10, 10, "row_ror:8")
    A(f"ds_write_b32 v29, v10 offset:{QF}")
    A("s_mov_b64 exec, 1")
    A(f"ds_add_u32 v28, v27 offset:{CNT + 4}")
    A("s_mov_b64 exec, -1")
    for _ in range(qdelay):
        issue_next()
    A(f"s_mov_b32 s58, {SPIN_MAX * 16}")
    LBL("L_qwait")
    A(f"ds_read_b32 v11, v28 offset:{CNT + 4}")
    A(f"ds_read_b128 v[16:19], v12 offset:{QF}")
    A(f"ds_read_b128 v[20:23], v12 offset:{QF + 16}")
    A(f"ds_read_b32 v24, v31 offset:{QF + 512}")
    A(f"ds_read_b32 v25, v31 offset:{QF + 768}")
    A("s_waitcnt lgkmcnt(0)")
    A("v_readfirstlane_b32 s56, v11")
    A("s_cmp_eq_u32 s56, 8")
    A("s_cbranch_scc1 L_qok")
    A("s_sub_u32 s58, s58, 1")
    A("s_cbranch_scc0 L_qwait")
    LBL("L_qok")
    STAMPX("qok")
    for k in range(4):
        A(f"v_cvt_pk_bf16_f32 v{Q[k]}, v{16 + 2 * k}, v{17 + 2 * k}")
    pacing[0] = True
    C("scores")
    for grp in range(4):
        while f"K{4 * grp + 3}" not in vm:
            issue_next()
        need(f"K{4 * grp + 3}")
        for j in range(4):
            for t in range(4 * grp, 4 * grp + 4):
                src2 = "0" if j == 0 else f"v{AT[t]}"
                A(f"v_dot2_f32_bf16 v{AT[t]}, v{KR + 4 * t + j}, v{Q[j]}, {src2}")
    curchunk[0] = chunk
    C("GEGLU activation for this lane's hidden unit, interleaved with the transposing score reduction")
    A("v_cvt_pk_bf16_f32 v24, v24, v25")
    A("v_lshlrev_b32 v26, 16, v24")
    A("v_and_b32 v25, 0xffff0000, v24")
    A("v_mul_f32 v27, v26, v26")
    A("v_mul_f32 v27, v27, v26")
    A("v_mov_b32 v28, v26")
    A("v_fmac_f32 v28, 0x3d372713, v27")
    A("v_mul_f32 v28, 0xc0135761, v28")
    A("v_exp_f32 v28, v28")
    for t in range(8):
        dpp("v_add_f32", AT[t], AT[t], AT[t], "row_ror:8", bm=0x3)
        dpp("v_add_f32", AT[t], AT[t + 8], AT[t + 8], "row_ror:8", bm=0xC)
    A("v_add_f32 v28, 1.0, v28")
    A("v_rcp_f32 v28, v28")
    for t in range(4):
        dpp("v_add_f32", AT[t], AT[t], AT[t], "row_half_mirror", bm=0x5)
        dpp("v_add_f32", AT[t], AT[t + 4], AT[t + 4], "row_half_mirror", bm=0xA)
    A("v_mul_f32 v28, v26, v28")
    A("v_cvt_pk_bf16_f32 v28, v28, v28")
    for t in range(4):
        dpp("v_add_f32", AT[t], AT[t], AT[t], "quad_perm:[2,3,0,1]")
    A("v_lshlrev_b32 v28, 16, v28")
    A(f"v_cndmask_b32 v{AT[0]}, v{AT[0]}, v{AT[2]}, s[36:37]")
    A(f"v_cndmask_b32 v{AT[1]}, v{AT[1]}, v{AT[3]}, s[36:37]")
    A("v_mul_f32 v28, v28, v25")
    A(f"v_cmp_ge_u32 vcc, s93, v{vR}")
    dpp("v_add_f32", AT[0], AT[0], AT[0], "quad_perm:[1,0,3,2]")
    dpp("v_add_f32", AT[1], AT[1], AT[1], "quad_perm:[1,0,3,2]")
    A("v_cndmask_b32 v28, 0, v28, vcc")
    A(f"v_cndmask_b32 v10, v{AT[0]}, v{AT[1]}, s[38:39]")
    A("v_cvt_pk_bf16_f32 v28, v28, v28")
    A("v_cvt_pk_bf16_f32 v10, v10, v10")
    for r in range(4):
        A(f"v_and_b32 v{AH + r}, v28, v{ME[r]}")
    A("v_lshlrev_b32 v10, 16, v10")
    A("v_mul_f32 v10, 0x3db504f3, v10")
    A("v_cvt_pk_bf16_f32 v10, v10, v10")
    A("v_lshlrev_b32 v10, 16, v10")
    A("v_mov_b32 v14, v10")
    A(f"s_lshl_b32 s56, s{sS}, 7")
    A(f"s_lshl_b32 s57, s{sW}, 4")
    row_reduce("v_max_f32", [14])
    cross_reduce("v_max_f32", 14, 12)
    A("s_add_u32 s56, s56, s57")
    A("s_add_u32 s56, s56, s98")
    A("v_mov_b32 v11, s56")
    A(f"v_mov_b32 v13, s{sTA}")
    A(f"v_mov_b32 v15, s{sTB}")
    A(f"s_lshl_b32 s56, s{sW}, 2")
    A("v_mov_b32 v17, s56")
    if local:
        A(f"v_xor_b32 v18, {XM:#x}, v11")
    A("v_mov_b32 v30, 1")
    A("v_mov_b32 v31, 0")
    A("v_sub_f32 v10, v10, v14")
    A("v_mul_f32 v10, 0x3fb8aa3b, v10")
    A("v_exp_f32 v10, v10")
    A("s_nop 0")
    A("v_mov_b32 v12, v10")
    A("v_cvt_pk_bf16_f32 v10, v10, v10")
    A("s_nop 0")
    for t in range(16):
        if t < 4:
            dpp("v_add_f32", 12, 12, 12, steps[t])
        if t == 4:
            A("v_mov_b32 v16, v12")
        if t == 5:
            A("v_permlane16_swap_b32 v16, v12")
            A("v_add_f32 v12, v16, v12")
            A("v_mov_b32 v16, v12")
        if t == 6:
            A("v_permlane32_swap_b32 v16, v12")
            A("v_add_f32 v12, v16, v12")
        if t == 7:
            RAW("s_mov_b64 exec, 1")
            if local:
                issue("STMLA", "global_store_dwordx4 v18, v[12:15], s[30:31]", window=False)
            issue("STML", f"global_store_dwordx4 v11, v[12:15], s[30:31] {hpol}", window=False)
            RAW(f"ds_write_b32 v17, v14 offset:{MX}")
            RAW(f"ds_add_u32 v31, v30 offset:{CNT + 8}")
            RAW("s_mov_b64 exec, -1")
            STAMPX("stml")
        for r in range(4):
            dpp("v_and_b32", KR + 4 * t + r, 10, ME[r], f"row_newbcast:{t}")
    C("addresses for the tail")
    A(f"v_lshrrev_b32 v16, 4, v{LANE}")
    A(f"v_and_b32 v17, 15, v{LANE}")
    A(f"s_mul_i32 s56, s{sW}, {OPS}")
    A("v_lshl_add_u32 v18, v17, 5, s56")
    A("v_lshl_add_u32 v18, v16, 4, v18")
    A(f"v_and_b32 v17, 7, v{LANE}")
    A(f"v_lshrrev_b32 v19, 3, v{LANE}")
    A(f"s_lshl_b32 s56, s{sW}, 6")
    A("v_lshl_add_u32 v20, v19, 3, s56")
    A(f"v_mov_b32 v21, {OPS}")
    A("v_mad_u32_u24 v21, v17, v21, v20")
    A(f"v_mov_b32 v22, {YPS}")
    A("v_mad_u32_u24 v22, v17, v22, v20")
    A(f"s_lshl_b32 s56, s{sS}, 10")
    A(f"s_lshl_b32 s57, s{sW}, 7")
    A("s_add_u32 s56, s56, s57")
    A("s_add_u32 s56, s56, s97")
    A("v_lshl_add_u32 v23, v19, 4, s56")
    A(f"s_lshl_b32 s56, s{sH}, 9")
    A("s_add_u32 s56, s56, s57")
    A("s_add_u32 s56, s56, s99")
    A("v_lshl_add_u32 v24, v19, 4, s56")
    A("v_lshrrev_b32 v25, 1, v16")
    A(f"v_mul_u32_u24 v25, {YPS}, v25")
    A(f"s_mul_i32 s56, s{sW}, {2 * YPS}")
    A("v_add_u32 v25, s56, v25")
    A("v_and_b32 v26, 1, v16")
    A("v_lshl_add_u32 v25, v26, 4, v25")
    A("v_lshl_add_u32 v25, v17, 5, v25")
    A(f"v_and_b32 v26, 31, v{LANE}")
    A(f"s_lshl_b32 s57, s{sH}, 4")
    A("s_add_u32 s56, s57, s99")
    if csx:
        A(f"s_sub_u32 s57, s95, s{sS}")
        A("s_lshl_b32 s57, s57, 14")
        A("s_add_u32 s56, s56, s57")
    A("v_lshl_add_u32 v26, v26, 9, s56")
    A("v_mov_b32 v27, s42")
    if local:
        A(f"v_xor_b32 v19, {XO_:#x}, v23")
    A("v_lshlrev_b32 v28, 5, v17")
    A(f"s_lshl_b32 s56, s{sS}, 3")
    A("s_mov_b64 s[60:61], 0xff")
    A("s_lshl_b64 s[60:61], s[60:61], s56")
    A("s_not_b64 s[62:63], s[60:61]")
    A(f"s_lshl_b64 s[50:51], 1, s{sH}")
    A("s_andn2_b64 s[50:51], s[52:53], s[50:51]")
    if csx:
        A("s_mov_b64 s[50:51], s[52:53]")
    A(f"v_and_b32 v29, 15, v{LANE}")
    A(f"v_mul_u32_u24 v29, {YPS}, v29")
    A(f"s_lshl_b32 s56, s{sH}, 3")
    A("v_add_u32 v29, s56, v29")
    pacing[0] = False
    STAMPX("pvstart")
    pend.append(("XO", f"global_load_dword v{XO}, v27, s[8:9]"))
    if touch_out:
        pend.append(("TO", f"global_load_dword v{XP}, v27, s[26:27]"))

    wdone = [False]

    def wblock():
        C("softmax weights of the 8 slices from the 64 per-wave records")
        A(f"s_mov_b32 s58, {SPIN_MAX}")
        need("MLG")
        LBL("L_chk1")
        A(f"v_cmp_ne_u32 vcc, s{sTA}, v{MLG + 1}")
        A(f"v_cmp_ne_u32 s[56:57], s{sTB}, v{MLG + 3}")
        A("s_or_b64 vcc, vcc, s[56:57]")
        A("s_cbranch_scc0 L_ok1")
        A("s_sub_u32 s58, s58, 1")
        A("s_cbranch_scc1 L_ok1")
        if ml_block and slm:
            A(f"s_sleep {slm}")
        if local:
            A(f"v_xor_b32 v{vMLG}, {XM:#x}, v{vMLG}")
            A("s_mov_b64 exec, vcc")
        A(mltext)
        A("s_waitcnt vmcnt(0)")
        A("s_branch L_chk1")
        LBL("L_ok1")
        if local:
            A("s_mov_b64 exec, -1")
        dpp("v_max_f32", 16, MLG + 2, MLG + 2, steps[0])
        A("s_nop 1")
        row_reduce("v_max_f32", [16], steps[1:3])
        dpp("v_max_f32", 10, 16, 16, "row_ror:8")
        cross_reduce("v_max_f32", 10, 11)
        A(f"v_sub_f32 v11, v{MLG + 2}, v10")
        A("v_sub_f32 v10, v16, v10")
        A("v_mul_f32 v11, 0x3fb8aa3b, v11")
        A("v_mul_f32 v10, 0x3fb8aa3b, v10")
        A("v_exp_f32 v11, v11")
        A("v_exp_f32 v10, v10")
        A(f"v_mul_f32 v11, v11, v{MLG}")
        A("s_nop 1")
        row_reduce("v_add_f32", [11])
        cross_reduce("v_add_f32", 11, 16)
        A("v_rcp_f32 v11, v11")
        A(f"s_mov_b32 s58, {SPIN_MAX}")
        A(f"v_mul_f32 v{vWT}, v10, v11")

    def mxblock():
        C("workgroup max from the 8 wave maxima; this wave's factor")
        A(f"s_mov_b32 s58, {SPIN_MAX * 16}")
        LBL("L_mxwait")
        A(f"ds_read_b32 v16, v31 offset:{CNT + 8}")
        A(f"ds_read_b128 v[48:51], v31 offset:{MX}")
        A(f"ds_read_b128 v[52:55], v31 offset:{MX + 16}")
        A("s_waitcnt lgkmcnt(0)")
        A("v_readfirstlane_b32 s56, v16")
        A("s_cmp_eq_u32 s56, 8")
        A("s_cbranch_scc1 L_mxok")
        A("s_sub_u32 s58, s58, 1")
        A("s_cbranch_scc0 L_mxwait")
        LBL("L_mxok")
        A("v_max3_f32 v48, v48, v49, v50")
        A("v_max3_f32 v51, v51, v52, v53")
        A("v_max3_f32 v48, v48, v54, v55")
        A("v_max_f32 v48, v48, v51")
        A("v_sub_f32 v10, v14, v48")
        A("v_mul_f32 v10, 0x3fb8aa3b, v10")
        A("v_exp_f32 v30, v10")
        STAMPX("mlok")

    for t in range(16):
        while f"V{t}" not in vm:
            issue_next()
        while pend and len(vm) - max(done[0], vm.index(f"V{t}")) < wineff(pend[0][0]):
            issue(*pend.pop(0), window=False)
        if t == mx_at:
            mxblock()
        if pre2 and t == pre2:
            C("wave 4 reads the y lines once, long before they are written")
            A(f"s_cmp_lg_u32 s{sW}, 4")
            A("s_cbranch_scc1 L_nopre2")
            A("s_mov_b64 exec, s[50:51]")
            if fast2:
                A(f"v_xor_b32 v56, {XY:#x}, v26")
                A(f"global_load_dwordx4 v[56:59], v56, s[30:31] {hpol}")
            else:
                A(f"global_load_dwordx4 v[56:59], v26, s[30:31] {hpol}")
            A("s_mov_b64 exec, -1")
            LBL("L_nopre2")
        if t == pre1:
            A("s_mov_b64 exec, s[62:63]")
            issue("PRE1", f"global_load_dwordx4 v[60:63], v{vOG}, s[30:31] {hpol}", window=False)
            A("s_mov_b64 exec, -1")
        if ml_block and not wdone[0] and "MLG" in vm and vm.index("MLG") < max(done[0] + 1, vm.index(f"V{t}")):
            assert vm.index("STML") < vm.index("MLG")
            wblock()
            wdone[0] = True
        need(f"V{t}")
        c = "0" if t == 0 else f"v[{DPV}:{DPV + 3}]"
        A(f"v_mfma_f32_16x16x32_bf16 v[{DPV}:{DPV + 3}], v[{KR + 4 * t}:{KR + 4 * t + 3}], v[{VR + 4 * t}:{VR + 4 * t + 3}], {c}")
        if t == 14:
            while pend:
                issue(*pend.pop(0), window=False)
    assert not pend and (wdone[0] or not ml_block)
    STAMPX("vland")
    if w_tail == 1:
        for w in wl:
            issue(*w, window=False)
    A("s_mov_b64 exec, s[52:53]")
    A(f"s_nop {3 if w_tail == 1 else 6}")
    for r in range(4):
        A(f"v_mul_f32 v{DPV + r}, v30, v{DPV + r}")
    A(f"ds_write_b128 v18, v[{DPV}:{DPV + 3}] offset:{OP}")
    A("s_mov_b64 exec, -1")
    A("s_waitcnt lgkmcnt(0)")
    A("s_barrier")
    A(f"ds_read_b64 v[16:17], v21 offset:{OP}")
    A("s_waitcnt lgkmcnt(0)")
    dpp("v_add_f32", 14, 17, 17, steps[0])
    dpp("v_add_f32", 12, 16, 16, steps[0])
    A("s_nop 0")
    row_reduce("v_add_f32", [14, 12], steps[1:3])
    A("s_mov_b64 exec, s[54:55]")
    if local:
        issue("STOA", "global_store_dwordx4 v19, v[12:15], s[30:31]", window=False)
    if not local:
        issue("STO", f"global_store_dwordx4 v23, v[12:15], s[30:31] {hpol}", window=False)
    OG = G1
    if w_tail == 2:
        A("s_mov_b64 exec, -1")
        for w in wl:
            issue(*w, window=False)
    A("s_mov_b64 exec, s[62:63]")
    if first_delay:
        A(f"s_sleep {first_delay}")
    issue("OG", f"global_load_dwordx4 v[{KR}:{KR + 3}], v{vOG}, s[30:31] {hpol}", window=False)
    A("s_mov_b64 exec, -1")
    if fast2:
        A(f"v_xor_b32 v30, {XY:#x}, v24")
        A(f"v_xor_b32 v31, {XY:#x}, v26")
    C("own slice: taken from registers, never re-read from memory")
    A("ds_bpermute_b32 v10, v28, v12")
    A("ds_bpermute_b32 v11, v28, v14")
    STAMPX("opub")
    C("w_down part of the output projection while the hand-off is in flight")
    need("WD")
    A(f"v_mfma_f32_16x16x32_bf16 v[{DY}:{DY + 3}], v[{AH}:{AH + 3}], v[{WD}:{WD + 3}], 0")
    A("s_mov_b64 exec, s[60:61]")
    A("s_waitcnt lgkmcnt(0)")
    A(f"v_mov_b32 v{OG}, v10")
    A(f"v_mov_b32 v{OG + 2}, v11")
    A("s_mov_b64 exec, -1")
    if not ml_block:
        wblock()
    else:
        A(f"s_mov_b32 s58, {SPIN_MAX}")
    STAMPX("wts")
    if local:
        assert P1 == 1
        A(f"s_mov_b32 s58, {nfast}")
        poll("OA", P1, KR, vOG, 62, OG, OG + 2, sl1, 1, fall=True)
        A(f"s_mov_b32 s58, {SPIN_MAX}")
        A(f"v_xor_b32 v{vOG}, {XO_:#x}, v{vOG}")
        C("copy B (write-through): published here before falling back to it, or right after a fast success")
        A("s_mov_b64 exec, s[54:55]")
        A(f"global_store_dwordx4 v23, v[12:15], s[30:31] {hpol}")
        poll("O", P1, KR, vOG, 62, OG, OG + 2, sl1, 0)
        A("s_mov_b64 exec, s[54:55]")
        A(f"global_store_dwordx4 v23, v[12:15], s[30:31] {hpol}")
        A("s_mov_b64 exec, -1")
    else:
        poll("O", P1, KR, vOG, 62, OG, OG + 2, sl1, 1)
    STAMPX("ook")
    A(f"v_mul_f32 v10, v{vWT}, v{OG}")
    A(f"v_mul_f32 v11, v{vWT}, v{OG + 2}")
    A("s_nop 1")
    A("v_permlane32_swap_b32 v10, v11")
    A("v_add_f32 v10, v10, v11")
    cross_reduce("v_add_f32", 10, 11, swaps=("16",))
    A("s_nop 1")
    dpp("v_add_f32", 10, 10, 10, "row_ror:8")
    A("v_cvt_pk_bf16_f32 v10, v10, v10")
    A("s_nop 1")
    for k in range(2):
        for b4 in range(2):
            for b in range(2):
                p = 4 * b4 + 2 * b + k
                A(f"v_mov_b32_dpp v{16 + k}, v10 row_newbcast:{p} row_mask:{(0x5, 0xa)[b4]:#x} bank_mask:{(0x3, 0xc)[b]:#x}")
    for k in range(2):
        for r in range(4):
            A(f"v_and_b32 v{48 + 4 * k + r}, v{16 + k}, v{ME[r]}")
    A("s_nop 0")
    A(f"v_mfma_f32_16x16x32_bf16 v[{DY}:{DY + 3}], v[48:51], v[{WO0}:{WO0 + 3}], v[{DY}:{DY + 3}]")
    A(f"v_mfma_f32_16x16x32_bf16 v[{DY}:{DY + 3}], v[52:55], v[{WO1}:{WO1 + 3}], v[{DY}:{DY + 3}]")
    A("s_mov_b64 exec, s[40:41]")
    A("s_nop 6")
    A(f"ds_write_b128 v25, v[{DY}:{DY + 3}] offset:{YP}")
    A("s_mov_b64 exec, -1")
    A("s_waitcnt lgkmcnt(0)")
    A("s_barrier")
    A(f"s_cmp_ge_u32 s{sW}, 4")
    A("s_cbranch_scc1 L_final")
    A(f"ds_read_b64 v[16:17], v22 offset:{YP}")
    A(f"ds_read_b64 v[18:19], v22 offset:{YP + 8 * YPS}")
    A("s_waitcnt lgkmcnt(0)")
    A("v_add_f32 v14, v17, v19")
    A("v_add_f32 v12, v16, v18")
    A("s_nop 0")
    row_reduce("v_add_f32", [14, 12], steps[:3])
    A("s_mov_b64 exec, s[54:55]")
    if fast2:
        C("copy A: plain store (seen through the shared L2 by a reader on the same die); copy B: write-through")
        A("global_store_dwordx4 v30, v[12:15], s[30:31]")
    A(f"global_store_dwordx4 v24, v[12:15], s[30:31] {hpol}")
    if stamps:
        A("s_mov_b64 exec, -1")
        STAMPX("end")
        A("s_branch L_stamps")
    else:
        A("s_endpgm")
    LBL("L_final")
    A(f"s_cmp_lg_u32 s{sW}, 4")
    if stamps:
        STAMPX("end")
        A("s_cbranch_scc1 L_stamps")
    else:
        A("s_cbranch_scc1 L_end")
    A(f"s_mov_b32 s58, {SPIN_MAX}")
    C("own workgroup's piece straight from LDS (lanes 32..47), zero elsewhere")
    if not csx:
        A(f"ds_read_b64 v[20:21], v29 offset:{YP}")
    A("v_mov_b32 v16, 0")
    A("v_mov_b32 v18, 0")
    if not csx:
        A("s_mov_b32 exec_lo, 0")
        A("s_mov_b32 exec_hi, 0xffff")
        A("s_waitcnt lgkmcnt(0)")
        A("v_mov_b32 v16, v20")
        A("v_mov_b32 v18, v21")
    if fd2:
        A(f"s_sleep {fd2}")
    if fast2:
        A(f"s_mov_b32 s58, {nfast}")
        poll("YA", P2, KR + 32, 31, 50, 16, 18, sl2, 0, fall=True)
        A(f"s_mov_b32 s58, {SPIN_MAX}")
    poll("Y", P2, KR + 32, 26, 50, 16, 18, sl2, 0)
    A("s_nop 0")
    A("v_permlane32_swap_b32 v16, v18")
    A("v_add_f32 v16, v16, v18")
    A(f"v_lshlrev_b32 v10, 16, v{XO}")
    A(f"v_and_b32 v11, 0xffff0000, v{XO}")
    row_reduce("v_add_f32", [16])
    cross_reduce("v_add_f32", 16, 17, swaps=("16",))
    A("s_nop 0")
    A("v_readlane_b32 s56, v16, 32")
    A("v_add_f32 v10, v10, v16")
    A("s_nop 0")
    A("v_add_f32 v11, s56, v11")
    A("v_cvt_pk_bf16_f32 v10, v10, v11")
    A("s_mov_b64 exec, 1")
    A(f"global_store_dword v27, v10, s[26:27] {opol}")
    A("s_cmp_lg_u32 s2, 0")
    A("s_cbranch_scc1 L_nowbump")
    A(f"v_mov_b32 v12, {W_OFF}")
    A(f"global_store_dword v12, v13, s[30:31] {hpol}")
    LBL("L_nowbump")
    if stamps:
        A("s_mov_b64 exec, -1")
        STAMPX("end")
        LBL("L_stamps")
        ns = len(stamp_idx)
        nq = (ns + 1) // 2
        A("s_waitcnt lgkmcnt(0)")
        A("s_lshl_b32 s56, s2, 3")
        A(f"s_add_u32 s56, s56, s{sW}")
        A(f"s_mul_i32 s56, s56, {nq * 16}")
        A(f"s_add_u32 s56, s56, {STAMP:#x}")
        A("v_mov_b32 v10, s56")
        A("s_mov_b64 exec, 1")
        for q in range(nq):
            for j in range(4):
                k = 4 * q + j
                if k >= 2 * ns:
                    k -= 2
                A(f"v_mov_b32 v{12 + j}, s{SB + k}")
            A(f"global_store_dwordx4 v10, v[12:15], s[30:31] offset:{q * 16}")
            A("s_nop 2")
        print("stamps per wave:", nq * 2, list(stamp_idx), file=sys.stderr)
    LBL("L_end")
    A("s_endpgm")
    L.append('.section .rodata,"a"')
    L.append(".p2align 6")
    L.append(f".amdhsa_kernel {NAME}_kernel")
    L.append("  .amdhsa_next_free_vgpr 256")
    L.append("  .amdhsa_next_free_sgpr 102")
    L.append("  .amdhsa_accum_offset 256")
    L.append("  .amdhsa_group_segment_fixed_size 0")
    L.append("  .amdhsa_kernarg_size 96")
    L.append("  .amdhsa_user_sgpr_count 2")
    L.append("  .amdhsa_user_sgpr_kernarg_segment_ptr 1")
    L.append("  .amdhsa_system_sgpr_workgroup_id_x 1")
    L.append("  .amdhsa_float_denorm_mode_32 3")
    L.append(".end_amdhsa_kernel")
    return "\n".join(L) + "\n"


if __name__ == "__main__":
    out = sys.argv[1]
    kw = {}
    for a in sys.argv[2:]:
        k, v = a.split("=")
        try:
            v = int(v)
        except ValueError:
            pass
        kw[k] = v
    open(out, "w").write(gen(**kw))
```

```python
import sys
NAME = "parallel_sum__sliding_block_cached__geglu_ffn__decode"
HEADER = """; Kernarg layout for this problem (96 bytes, ptrs only, base s[0:1]):
;
; Hand-offs are 16-byte pieces {value, tagA, value, tagB} written with sc1 (write-through) stores and read with
; the shared L2 first; a reader elsewhere falls back to the write-through copy, so any placement is correct.
"""

W_OFF = 0
REC0 = 0x40000
MLR = 0x180000
OREC = 0x100000
YREC = 0x1A0000
XR, XM, XO_, XY = 0xC0000, 0x8000, 0x40000, 0x60000
STAMP = 512 << 20
P0P = 0
QF = 8192
CNT = 9216
MX = 9248
OP = 9472
OPS = 544
YP = OP + 8 * OPS
YPS = 288
LDS_BYTES = YP + 16 * YPS

C_TAG = 0x9E3779B9
C_TAGB = 0x5BD1E995
SPIN_MAX = 1 << 18
ALL_STAMPS = ["entry", "kernarg", "x", "p0w", "bar1", "gissue", "gok", "qok", "stml", "pvstart", "mlok", "vland", "opub", "wts", "ook", "end"]


def gen(pol="nt", stamps="", rot=0, D=5, g_after=11, ml_after=11, w_after=15, k_pre=2, prio=0, hpol="sc1", chunk=36, p0pol=None, wpol=None, qdelay=4, touch_out=0, sl1=4, sl2=2, sl0=0, first_delay=0, mx_at=11, P1=3, P2=3, fd2=0, pre2=0, opol="", DV=None, DL=None, last_n=8, prios="", boost=0, DW=None, pn=16, spread=0, ml_block=0, slm=4, tlb=0, pre1=-1, csx=0, fast2=0, nfast=64, local=0, fperm=0, funit=0, sb=0, w_tail=0, p0map=0, chunk1=None, cpf=0, ml2=0, gsplit=0):
    L = []
    p0pol = pol if p0pol is None else p0pol
    wpol = pol if wpol is None else wpol
    stamps = ALL_STAMPS if stamps == "all" else [s for s in stamps.split(",") if s]

    vm = []
    done = [0]
    pend = []
    cnt = [0]
    pacing = [False]

    def RAW(s):
        L.append("    " + s)

    def A(s):
        RAW(s)
        if pacing[0]:
            cnt[0] += 1
            if cnt[0] >= curchunk[0] and pend and not nopace[0]:
                issue_next()

    nopace = [False]
    curchunk = [chunk if chunk1 is None else chunk1]

    def C(s):
        L.append("    ; " + s)

    def LBL(s):
        L.append(s + ":")

    def need(name):
        i = vm.index(name)
        if i >= done[0]:
            RAW(f"s_waitcnt vmcnt({len(vm) - 1 - i})")
            done[0] = i + 1

    DV = D if DV is None else DV
    DL = DV if DL is None else DL
    priomap = dict(x.split(":") for x in prios.split(",") if x)

    def win(name):
        if name[0] == "K" or name == "G":
            return D
        if name[0] == "V" and int(name[1:]) < 16 - last_n:
            return DV
        if name[0] != "V" and name not in ("MLG", "ML2") and DW is not None:
            return DW
        return DL

    SPECIAL = ("G", "STML", "STMLA", "MLG", "PRE1")

    def wineff(name):
        d = win(name)
        k = d
        while True:
            ns = sum(1 for o in vm[max(done[0], len(vm) - k):] if o in SPECIAL)
            if d + sb * ns <= k:
                return k
            k = d + sb * ns

    def issue(name, text, window=True):
        d = wineff(name)
        if window and len(vm) - done[0] >= d:
            n = d - 1
            RAW(f"s_waitcnt vmcnt({n})")
            done[0] = len(vm) - n
        RAW(text)
        vm.append(name)
        cnt[0] = 0
        if name in priomap:
            RAW(f"s_setprio {priomap[name]}")
        STAMPX("i" + name)

    def issue_next():
        name, text = pend.pop(0)
        issue(name, text)

    stamp_idx = {}
    SB = 64

    def STAMPX(tag):
        if tag in stamps:
            i = stamp_idx.setdefault(tag, len(stamp_idx))
            RAW(f"s_memrealtime s[{SB + 2 * i}:{SB + 1 + 2 * i}]")

    def dpp(op, d, s0, s1, ctrl, rm=0xF, bm=0xF):
        A(f"{op}_dpp v{d}, v{s0}, v{s1} {ctrl} row_mask:{rm:#x} bank_mask:{bm:#x}")

    steps = ["quad_perm:[1,0,3,2]", "quad_perm:[2,3,0,1]", "row_half_mirror", "row_mirror"]

    def row_reduce(op, regs, st=steps):
        for s in st:
            for r in regs:
                dpp(op, r, r, r, s)
            if len(regs) < 3:
                A(f"s_nop {2 - len(regs)}")

    def cross_reduce(op, r, t, swaps=("16", "32")):
        for sw in swaps:
            A(f"v_mov_b32 v{t}, v{r}")
            A("s_nop 1")
            A(f"v_permlane{sw}_swap_b32 v{t}, v{r}")
            A(f"{op} v{r}, v{t}, v{r}")

    def poll(tag, P, base, vaddr, spend, f0, f1, sleep, pre_issued, fall=False, scale=None):
        ld = lambda j: f"global_load_dwordx4 v[{base + 4 * j}:{base + 4 * j + 3}], v{vaddr}, s[30:31] {hpol}"
        A(f"s_mov_b64 exec, s[{spend}:{spend + 1}]")
        for j in range(pre_issued, P - 1):
            A(ld(j))
            if sleep:
                A(f"s_sleep {sleep}")
        if P == 1 and pre_issued:
            A(f"s_branch L_skip{tag}")
        LBL(f"L_poll{tag}")
        for j in range(P):
            A(ld((j + P - 1) % P))
            if P == 1 and pre_issued:
                LBL(f"L_skip{tag}")
            A(f"s_waitcnt vmcnt({P - 1})")
            A(f"v_cmp_eq_u32 vcc, s{sTA}, v{base + 4 * j + 1}")
            A(f"v_cmp_eq_u32 s[56:57], s{sTB}, v{base + 4 * j + 3}")
            A("s_and_b64 exec, vcc, s[56:57]")
            if scale is None:
                A(f"v_mov_b32 v{f0}, v{base + 4 * j}")
                A(f"v_mov_b32 v{f1}, v{base + 4 * j + 2}")
            else:
                A(f"v_mul_f32 v{f0}, v{scale}, v{base + 4 * j}")
                A(f"v_mul_f32 v{f1}, v{scale}, v{base + 4 * j + 2}")
            A(f"s_andn2_b64 s[{spend}:{spend + 1}], s[{spend}:{spend + 1}], exec")
            A(f"s_cbranch_scc0 L_done{tag[0]}")
            A(f"s_mov_b64 exec, s[{spend}:{spend + 1}]")
            if sleep:
                A(f"s_sleep {sleep}")
        A("s_sub_u32 s58, s58, 1")
        A(f"s_cbranch_scc0 L_poll{tag}")
        if fall:
            return
        LBL(f"L_done{tag}")
        A("s_mov_b64 exec, -1")

    L.append(HEADER + f"; @launch grid=(256,1,1) block=(512,1,1) lds={LDS_BYTES}")
    L.append('.amdgcn_target "amdgcn-amd-amdhsa--gfx950"')
    L.append(".text")
    L.append(f".globl {NAME}_kernel")
    L.append(".p2align 8")
    L.append(f".type {NAME}_kernel,@function")
    L.append(f"{NAME}_kernel:")

    LANE = 1
    ME = [2, 3, 4, 5]
    Q = [6, 7, 8, 9]
    KOFF = list(range(32, 48))
    AT = list(range(48, 64))
    KR, VR = 64, 128
    X, XP, XO = 192, 196, 197
    WQA, WQB, WGA, WGB = 200, 204, 208, 212
    G0, G1 = 216, 220
    WO0, WO1, WD = 224, 228, 232
    AH, DPV, DY = 236, 240, 244
    vWO, vWD, vOG, vMLG, vG, vWT, vR = 248, 249, 250, 251, 252, 253, 254
    sH, sS, sW = 3, 4, 5
    sTA, sTB = 33, 34

    def kload(t):
        return (f"K{t}", f"global_load_dwordx4 v[{KR + 4 * t}:{KR + 4 * t + 3}], v{KOFF[t]}, s[10:11] {pol}")

    def vload(t):
        return (f"V{t}", f"global_load_dwordx4 v[{VR + 4 * t}:{VR + 4 * t + 3}], v{KOFF[t]}, s[12:13] {pol}")

    gtext0 = f"global_load_dwordx4 v[{G0}:{G0 + 3}], v{vG}, s[30:31] {hpol}"
    gtext = gtext0 if not gsplit else "s_mov_b64 exec, s[100:101]\n    " + gtext0 + "\n    s_mov_b64 exec, -1"
    wl = [("WD", f"global_load_dwordx4 v[{WD}:{WD + 3}], v{vWD}, s[24:25] {wpol}"),
          ("WO0", f"global_load_dwordx4 v[{WO0}:{WO0 + 3}], v{vWO}, s[16:17] {wpol}"),
          ("WO1", f"global_load_dwordx4 v[{WO1}:{WO1 + 3}], v{vWO}, s[16:17] offset:2048 {wpol}")]

    STAMPX("entry")
    A("s_cmp_ge_u32 s2, 256")
    A("s_cbranch_scc1 L_end")
    A("s_load_dwordx16 s[8:23], s[0:1], 0")
    A("s_load_dwordx8 s[24:31], s[0:1], 64")
    if cpf:
        C("read this kernel's own code once so that later instruction fetches find it in L2")
        A("s_getpc_b64 s[90:91]")
        LBL("L_pc")
        if cpf > 1:
            A(f"s_and_b32 s3, s2, {(cpf - 1) << 3:#x}")
            A("s_cbranch_scc1 L_nocpf")
        A("v_lshlrev_b32 v10, 4, v0")
        A("v_min_u32 v10, L_codeend - L_pc - 16, v10")
        issue("CPF", "global_load_dwordx4 v[56:59], v10, s[90:91]", False)
        if cpf > 1:
            LBL("L_nocpf")
    if prio or prios:
        A("s_setprio 3")
    A("v_lshrrev_b32 v10, 6, v0")
    A(f"v_and_b32 v{LANE}, 63, v0")
    if local == 0:
        A(f"s_lshr_b32 s{sH}, s2, 3")
        A(f"v_readfirstlane_b32 s{sW}, v10")
        A(f"s_and_b32 s{sS}, s2, 7")
        A(f"s_add_u32 s94, s{sH}, {fperm}")
        A("s_and_b32 s94, s94, 31")
    else:
        C("x = b&7, jj = (b>>3)&3, s = b>>5; FFN slot s94 = 4x + jj")
        A("s_and_b32 s6, s2, 7")
        A(f"v_readfirstlane_b32 s{sW}, v10")
        A("s_bfe_u32 s7, s2, 0x20003")
        A(f"s_lshr_b32 s{sS}, s2, 5")
        A("s_lshl2_add_u32 s94, s6, s7")
        if local == 1:
            A("s_bfe_u32 s35, s2, 0x10003")
            A(f"s_lshl1_add_u32 s{sH}, s6, s35")
            A("s_and_b32 s35, s2, 16")
            A(f"s_or_b32 s{sH}, s{sH}, s35")
        else:
            A(f"s_and_b32 s{sH}, s2, 31")
    C("lane fields: v11 = g, v12 = i, v13 = b, v14 = e")
    A(f"v_lshrrev_b32 v11, 4, v{LANE}")
    A(f"v_and_b32 v12, 15, v{LANE}")
    A(f"v_bfe_u32 v13, v{LANE}, 3, 1")
    A(f"v_and_b32 v14, 7, v{LANE}")
    C("s = 4*ch + rb ; s6 = 128 rb + 16 w = first weight row of this wave")
    A(f"s_and_b32 s6, s{sS}, 3")
    A("s_lshl_b32 s6, s6, 7")
    A(f"s_lshl_b32 s7, s{sW}, 4")
    A("s_add_u32 s6, s6, s7")
    if p0map:
        C("phase-0 job of this workgroup: head s92 = (h & ~1) | (s >> 2), column half / matrix ch = h & 1")
        A(f"s_lshr_b32 s92, s{sS}, 2")
        A(f"s_and_b32 s35, s{sH}, 30")
        A("s_or_b32 s92, s92, s35")
        A(f"s_and_b32 s35, s{sH}, 1")
    else:
        A(f"s_mov_b32 s92, s{sH}")
        A(f"s_lshr_b32 s35, s{sS}, 2")
    A("v_lshl_add_u32 v15, v11, 2, s6")
    A("v_lshl_add_u32 v21, v13, 1, v15")
    A("v_xor_b32 v23, 1, v13")
    A("v_lshl_add_u32 v23, v23, 1, v15")
    A(f"v_lshlrev_b32 v16, 4, v{LANE}")
    A("v_lshlrev_b32 v17, 1, v21")
    C("wq offset: row*8192 + 256h + 128ch + 16e")
    A("s_lshl_b32 s43, s92, 8")
    A("s_lshl_b32 s42, s35, 7")
    A("s_add_u32 s43, s43, s42")
    A("v_lshl_add_u32 v19, v14, 4, s43")
    A("v_lshl_add_u32 v19, v21, 13, v19")
    A("v_add_u32 v20, 0x2000, v19")
    C("gate/up offset")
    if not funit:
        assert not (p0map and (fperm or local))
        A("s_mul_i32 s44, s92, 43") if p0map else A("s_mul_i32 s44, s94, 43")
        A("s_and_b32 s45, s44, 7")
        A("s_andn2_b32 s46, s44, 7")
        A("s_lshl_b32 s46, s46, 1")
        A("s_add_u32 s47, s45, 42")
        A("s_lshr_b32 s47, s47, 3")
        A("s_mov_b32 s93, 42")
    else:
        C("hidden units of this group: slots 0..10 own 64, slots 11..31 own 32 (43 blocks of 32)")
        A("s_lshl_b32 s44, s94, 6")
        A("s_lshl_b32 s45, s94, 5")
        A("s_add_u32 s45, s45, 352")
        A("s_cmp_lt_u32 s94, 11")
        A("s_cselect_b32 s44, s44, s45")
        A("s_cselect_b32 s47, 7, 3")
        A("s_cselect_b32 s93, 63, 31")
        A("s_mov_b32 s45, 0")
        A("s_lshl_b32 s46, s44, 1")
    A("v_min_u32 v22, s47, v14")
    A("v_lshl_add_u32 v22, v22, 4, s46")
    A("s_movk_i32 s48, 2752")
    A("v_mad_u32_u24 v22, v23, s48, v22")
    C("K/V offsets")
    A(f"s_lshl_b32 s49, s{sH}, 23")
    A(f"s_mul_i32 s50, s{sS}, {pn * 8192}")
    A("s_add_u32 s49, s49, s50")
    A(f"s_add_u32 s49, s49, {28672 * 256}")
    A(f"v_lshl_add_u32 v{KOFF[0]}, v0, 4, s49")

    def koffs(lo, hi):
        for t in range(lo, hi):
            if rot == 0:
                if t:
                    A(f"v_add_u32 v{KOFF[t]}, {(t // pn) * 8 * pn * 8192 + (t % pn) * 8192:#x}, v{KOFF[0]}")
            else:
                A(f"s_add_u32 s51, s50, {t}")
                A("s_and_b32 s51, s51, 15")
                A("s_lshl_b32 s51, s51, 13")
                A(f"v_add_u32 v{KOFF[t]}, s51, v28")
    if rot:
        A(f"v_mov_b32 v28, v{KOFF[0]}")
        A(f"s_mul_i32 s50, s{sH}, {rot}")
    koffs(0, 16)
    A("v_mov_b32 v24, 0")
    A("v_mov_b32 v25, 0")
    A("v_mov_b32 v26, 0")
    A("v_mov_b32 v27, 0")
    A(f"ds_write_b128 v24, v[24:27] offset:{CNT}")
    A("s_cmp_eq_u32 s35, 0")
    A("s_waitcnt lgkmcnt(0)")
    STAMPX("kernarg")
    issue("X", f"global_load_dwordx4 v[{X}:{X + 3}], v16, s[8:9]", False)
    issue("XP", f"global_load_dword v{XP}, v17, s[8:9]", False)
    A("s_cselect_b32 s20, s20, s22")
    A("s_cselect_b32 s21, s21, s23")
    issue("WQA", f"global_load_dwordx4 v[{WQA}:{WQA + 3}], v19, s[14:15] {p0pol}", False)
    issue("WQB", f"global_load_dwordx4 v[{WQB}:{WQB + 3}], v20, s[14:15] {p0pol}", False)
    issue("WGA", f"global_load_dwordx4 v[{WGA}:{WGA + 3}], v22, s[20:21] {p0pol}", False)
    issue("WGB", f"global_load_dwordx4 v[{WGB}:{WGB + 3}], v22, s[20:21] offset:2752 {p0pol}", False)
    A(f"s_load_dword s32, s[30:31], {W_OFF}")
    if tlb:
        C("touch the pages used later (address translation is then warm): wave 0,5.. V, 1 wo, 2 w_down, 3 ws, 4 out")
        A("s_mov_b64 s[56:57], s[12:13]")
        A("s_mov_b32 s58, s49")
        A(f"s_lshl_b32 s59, s{sH}, 17")
        A(f"s_cmp_eq_u32 s{sW}, 1")
        A("s_cselect_b64 s[56:57], s[16:17], s[56:57]")
        A("s_cselect_b32 s58, s59, s58")
        A("s_lshl_b32 s59, s44, 10")
        A(f"s_cmp_eq_u32 s{sW}, 2")
        A("s_cselect_b64 s[56:57], s[24:25], s[56:57]")
        A("s_cselect_b32 s58, s59, s58")
        A(f"s_bfe_u32 s59, s{sH}, 0x10003")
        A("s_lshl_b32 s59, s59, 23")
        A(f"s_add_u32 s59, s59, {0x7000 if spread else 0x8000}") if spread else A("s_mov_b32 s59, 0x8000")
        A(f"s_cmp_eq_u32 s{sW}, 3")
        A("s_cselect_b64 s[56:57], s[30:31], s[56:57]")
        A("s_cselect_b32 s58, s59, s58")
        A(f"s_cmp_eq_u32 s{sW}, 4")
        A("s_cselect_b64 s[56:57], s[26:27], s[56:57]")
        A("s_cselect_b32 s58, 0, s58")
        A("v_mov_b32 v24, s58")
        issue("TLB", f"global_load_dword v255, v24, s[56:57] {pol}", False)
    A("s_barrier")
    if prio:
        A("s_setprio 0")
    for t in range(k_pre):
        issue(*kload(t), window=False)
    if p0map:
        A("s_mul_i32 s44, s94, 43")
        A("s_and_b32 s45, s44, 7")
    C("lane masks")
    A("s_mov_b32 s36, 0xcccccccc")
    A("s_mov_b32 s37, 0xcccccccc")
    A("s_mov_b32 s38, 0xaaaaaaaa")
    A("s_mov_b32 s39, 0xaaaaaaaa")
    A("s_mov_b32 s40, 0x00ff00ff")
    A("s_mov_b32 s41, 0xff00ff00")
    A("s_mov_b32 s52, -1")
    A("s_mov_b32 s53, 0")
    A("s_mov_b32 s54, 0x01010101")
    A("s_mov_b32 s55, 0x01010101")
    A(f"v_and_b32 v24, 1, v{LANE}")
    A("v_lshlrev_b32 v24, 4, v24")
    A("v_mov_b32 v25, 0xffff")
    A("v_lshlrev_b32 v24, v24, v25")
    for r in range(4):
        m = (0x03030303 << (2 * r)) & 0xFFFFFFFF
        A(f"s_mov_b32 s56, {m:#x}")
        A(f"s_mov_b32 s57, {m:#x}")
        A(f"v_cndmask_b32 v{ME[r]}, 0, v24, s[56:57]")
    C("output byte offset 128 cs + 4 h")
    A(f"s_xor_b32 s95, s{sS}, {csx}")
    A("s_lshl_b32 s42, s95, 7")
    A(f"s_lshl_b32 s43, s{sH}, 2")
    A("s_add_u32 s42, s42, s43")
    C("wo offset: (128h + 16w + 8(g&1) + 4b + (g>>1))*1024 + 128s + 16e")
    A("v_and_b32 v24, 1, v11")
    A("v_lshlrev_b32 v24, 3, v24")
    A("v_lshl_add_u32 v24, v13, 2, v24")
    A("v_lshrrev_b32 v25, 1, v11")
    A("v_add_u32 v24, v24, v25")
    A(f"s_lshl_b32 s56, s{sH}, 7")
    A("s_add_u32 s56, s56, s7")
    A("v_add_u32 v24, s56, v24")
    A(f"s_lshl_b32 s57, s{sS}, 7")
    A("v_lshl_add_u32 v25, v14, 4, s57")
    A(f"v_lshl_add_u32 v{vWO}, v24, 10, v25")
    C("w_down: r = 8w + 2g + b ; row = 43h + min(r,42)")
    A("v_lshl_add_u32 v24, v11, 1, v13")
    A(f"s_lshl_b32 s56, s{sW}, 3")
    A(f"v_add_u32 v{vR}, s56, v24")
    A(f"v_min_u32 v24, s93, v{vR}")
    A("v_add_u32 v26, s44, v24")
    A(f"v_lshl_add_u32 v{vWD}, v26, 10, v25")
    A("v_add_u32 v24, s45, v24")
    A("v_lshlrev_b32 v31, 2, v24")
    C("hand-off record bases: s96 rec0(h), s97 orec(h), s98 ml(h), s99 yrec(cs)")
    if True:
        A(f"s_lshl_b32 s56, s{sH}, 13")
        A(f"s_add_u32 s96, s56, {REC0:#x}")
        A(f"s_add_u32 s97, s56, {OREC:#x}")
        A(f"s_lshl_b32 s56, s{sH}, 10")
        A(f"s_add_u32 s98, s56, {MLR:#x}")
        A(f"s_lshl_b32 s56, s{sS}, 14")
        A(f"s_add_u32 s99, s56, {YREC:#x}")
    C("gather offsets")
    A(f"v_lshrrev_b32 v24, 3, v{LANE}")
    A(f"s_lshl_b32 s57, s{sW}, 7")
    A("v_lshlrev_b32 v25, 10, v24")
    A("v_lshl_add_u32 v25, v14, 4, v25")
    A("v_add_u32 v25, s57, v25")
    if gsplit:
        assert funit and not local and w_tail == 1
        A(f"s_lshl_b32 s56, s{sW}, 6")
        A(f"s_sub_u32 s56, s96, s56")
        A(f"v_add_u32 v{vG}, s56, v25")
    else:
        A(f"v_add_u32 v{vG}, s96, v25")
    A(f"v_add_u32 v{vOG}, s97, v25")
    A(f"v_lshl_add_u32 v{vMLG}, v{LANE}, 4, s98")
    if ml2:
        A(f"v_xor_b32 v255, {ml2 << 10:#x}, v{vMLG}")
    if local:
        A(f"v_xor_b32 v{vG}, {XR:#x}, v{vG}")
        A(f"v_xor_b32 v{vOG}, {XO_:#x}, v{vOG}")
        A(f"v_xor_b32 v{vMLG}, {XM:#x}, v{vMLG}")
    C("LDS write address of the phase-0 partials")
    A("v_lshrrev_b32 v24, 1, v11")
    A(f"s_lshl_b32 s56, s{sW}, 10")
    A("v_lshl_add_u32 v25, v24, 9, s56")
    A("v_and_b32 v26, 1, v11")
    A("v_lshl_add_u32 v25, v26, 4, v25")
    A("v_lshl_add_u32 v30, v14, 5, v25")
    A("v_xor_b32 v26, v24, v13")
    A("v_lshl_add_u32 v30, v26, 8, v30")
    C("LDS write address of the gathered q/gate/up value")
    A(f"v_bfe_u32 v24, v{LANE}, 4, 1")
    A("v_lshl_add_u32 v24, v14, 1, v24")
    A(f"v_lshrrev_b32 v25, 5, v{LANE}")
    A("v_lshl_add_u32 v24, v25, 6, v24")
    if gsplit:
        A(f"s_lshl_b32 s56, s{sW}, 3")
        A("s_mov_b32 s100, 0x0f0f0f0f")
        A("s_mov_b32 s101, 0x0f0f0f0f")
    else:
        A(f"s_lshr_b32 s56, s{sW}, 2")
        A("s_lshl_b32 s56, s56, 6")
        A("s_add_u32 s56, s56, s7")
    A("v_add_lshl_u32 v29, v24, s56, 2")

    pend.extend(kload(t) for t in range(k_pre, 16))
    pend.insert(g_after + 1 - k_pre, ("G", gtext))
    pend.extend(vload(t) for t in range(16))
    for i, w in enumerate(wl):
        if not w_tail:
            pend.insert([n for n, _ in pend].index(f"V{w_after}") + 1 + i, w)
    MLG = G0
    mltext = f"global_load_dwordx4 v[{MLG}:{MLG + 3}], v{vMLG}, s[30:31] {hpol}"
    pend.insert([n for n, _ in pend].index(f"V{ml_after}") + 1, ("MLG", mltext))
    ml2text = f"global_load_dwordx4 v[60:63], v255, s[30:31] {hpol}"
    if ml2:
        pend.insert([n for n, _ in pend].index("MLG"), ("ML2", ml2text))
    C("layernorm")
    need("XP")
    STAMPX("x")
    for k in range(4):
        A(f"v_lshlrev_b32 v{10 + 2 * k}, 16, v{X + k}")
        A(f"v_and_b32 v{11 + 2 * k}, 0xffff0000, v{X + k}")
    A("v_add_f32 v18, v10, v11")
    A("v_add_f32 v19, v12, v13")
    A("v_add_f32 v20, v14, v15")
    A("v_add_f32 v21, v16, v17")
    A("v_add_f32 v18, v18, v19")
    A("v_add_f32 v20, v20, v21")
    A("v_add_f32 v18, v18, v20")
    A("s_nop 1")
    row_reduce("v_add_f32", [18])
    cross_reduce("v_add_f32", 18, 19)
    A("v_mul_f32 v18, 0x3b000000, v18")
    for k in range(8):
        A(f"v_sub_f32 v{10 + k}, v{10 + k}, v18")
    A("v_mul_f32 v19, v10, v10")
    A("v_mul_f32 v20, v11, v11")
    for k in range(2, 8, 2):
        A(f"v_fmac_f32 v19, v{10 + k}, v{10 + k}")
        A(f"v_fmac_f32 v20, v{11 + k}, v{11 + k}")
    A("v_add_f32 v19, v19, v20")
    A("s_nop 1")
    row_reduce("v_add_f32", [19])
    cross_reduce("v_add_f32", 19, 20)
    A("v_mul_f32 v19, 0x3b000000, v19")
    A("v_cvt_pk_bf16_f32 v20, v18, v19")
    A("v_lshlrev_b32 v18, 16, v20")
    A("v_and_b32 v19, 0xffff0000, v20")
    A("v_add_f32 v19, 0x3727c5ac, v19")
    A("v_cvt_pk_bf16_f32 v19, v19, v19")
    A("v_lshlrev_b32 v19, 16, v19")
    A("v_sqrt_f32 v19, v19")
    A(f"v_lshlrev_b32 v21, 16, v{XP}")
    A(f"v_and_b32 v22, 0xffff0000, v{XP}")
    A("v_cvt_pk_bf16_f32 v19, v19, v19")
    A("v_lshlrev_b32 v19, 16, v19")
    A("v_rcp_f32 v20, v19")
    A("v_sub_f32 v21, v21, v18")
    A("v_sub_f32 v22, v22, v18")
    A("v_cvt_pk_bf16_f32 v21, v21, v22")
    A("v_and_b32 v22, 0xffff0000, v21")
    A("v_lshlrev_b32 v21, 16, v21")
    A("v_mul_f32 v10, v21, v20")
    A("v_mul_f32 v11, v22, v20")
    A("v_fma_f32 v12, -v10, v19, v21")
    A("v_fma_f32 v13, -v11, v19, v22")
    A("v_fmac_f32 v10, v12, v20")
    A("v_fmac_f32 v11, v13, v20")
    A("v_cvt_pk_bf16_f32 v10, v10, v10")
    A("v_cvt_pk_bf16_f32 v11, v11, v11")
    for r in range(4):
        A(f"v_and_b32 v{20 + r}, v10, v{ME[r]}")
    for r in range(4):
        A(f"v_and_b32 v{24 + r}, v11, v{ME[r]}")
    need("WGB")
    STAMPX("p0w")
    DQ, DG = 48, 52
    A(f"v_mfma_f32_16x16x32_bf16 v[{DQ}:{DQ + 3}], v[20:23], v[{WQA}:{WQA + 3}], 0")
    A(f"v_mfma_f32_16x16x32_bf16 v[{DG}:{DG + 3}], v[20:23], v[{WGA}:{WGA + 3}], 0")
    A(f"v_mfma_f32_16x16x32_bf16 v[{DQ}:{DQ + 3}], v[24:27], v[{WQB}:{WQB + 3}], v[{DQ}:{DQ + 3}]")
    A(f"v_mfma_f32_16x16x32_bf16 v[{DG}:{DG + 3}], v[24:27], v[{WGB}:{WGB + 3}], v[{DG}:{DG + 3}]")
    nfill = 0
    while len(vm) - done[0] < D and pend[0][0] != "G":
        issue_next()
        nfill += 1
    A(f"s_nop {max(0, 7 - nfill)}")
    for r in range(4):
        A(f"v_cndmask_b32 v{DQ + r}, v{DG + r}, v{DQ + r}, s[40:41]")
    A(f"ds_write_b128 v30, v[{DQ}:{DQ + 3}] offset:{P0P}")
    A("v_mov_b32 v28, 0")
    A("v_mov_b32 v27, 1")
    A("s_mov_b64 exec, 1")
    A(f"ds_add_rtn_u32 v10, v28, v27 offset:{CNT}")
    A("s_mov_b64 exec, -1")
    A("s_waitcnt lgkmcnt(0)")
    A("v_readfirstlane_b32 s56, v10")
    A(f"s_add_u32 s{sTA}, s32, {C_TAG:#x}")
    A(f"s_xor_b32 s{sTB}, s{sTA}, {C_TAGB:#x}")
    STAMPX("bar1")
    A("s_cmp_lg_u32 s56, 7")
    A("s_cbranch_scc1 L_nopub0")
    C("the wave that arrived last sums the 16 partials and publishes 64 pieces")
    for name, text in pend[:boost]:
        RAW(text)
    A(f"v_lshlrev_b32 v10, 3, v{LANE}")
    B0 = 192
    for p in range(16):
        A(f"ds_read_b64 v[{B0 + 2 * p}:{B0 + 2 * p + 1}], v10 offset:{P0P + p * 512}")
    if p0map:
        A(f"s_and_b32 s56, s{sS}, 3")
        A("s_lshl2_add_u32 s56, s35, s56")
        A("s_lshl3_add_u32 s56, s92, s56")
        A("s_lshl_b32 s56, s56, 10")
        A(f"s_add_u32 s56, s56, {REC0:#x}")
    else:
        A(f"s_lshl_b32 s56, s{sS}, 10")
        A("s_add_u32 s56, s56, s96")
    A(f"v_lshl_add_u32 v11, v{LANE}, 4, s56")
    A(f"v_mov_b32 v13, s{sTA}")
    A(f"v_mov_b32 v15, s{sTB}")
    if local:
        A(f"v_xor_b32 v10, {XR:#x}, v11")
    A("s_waitcnt lgkmcnt(0)")
    n = 16
    while n > 1:
        n //= 2
        for p in range(n):
            for c in range(2):
                dst = B0 + 2 * p + c if n > 1 else 12 + 2 * c
                A(f"v_add_f32 v{dst}, v{B0 + 2 * p + c}, v{B0 + 2 * (p + n) + c}")
    if local:
        A("global_store_dwordx4 v10, v[12:15], s[30:31]")
    A(f"global_store_dwordx4 v11, v[12:15], s[30:31] {hpol}")
    C("(this store is one extra vm op in wave 0 only: every later counted wait only gets stricter for it)")
    if boost:
        A("s_branch L_join0")
    LBL("L_nopub0")
    if boost:
        d0 = done[0]
        for _ in range(boost):
            issue_next()
        done[0] = d0
        LBL("L_join0")
    while pend[0][0] != "G":
        issue_next()
    issue_next()
    STAMPX("gissue")
    while len(vm) - 1 - vm.index("G") < D - 1 + sb:
        issue_next()
    A(f"s_mov_b32 s58, {SPIN_MAX}")
    need("G")
    if gsplit:
        A("s_mov_b64 exec, s[100:101]")
    LBL("L_chk0")
    A(f"v_cmp_ne_u32 vcc, s{sTA}, v{G0 + 1}")
    A(f"v_cmp_ne_u32 s[56:57], s{sTB}, v{G0 + 3}")
    A("s_or_b64 vcc, vcc, s[56:57]")
    A("s_cbranch_scc0 L_ok0")
    A("s_sub_u32 s58, s58, 1")
    A("s_cbranch_scc1 L_ok0")
    if local:
        A(f"v_xor_b32 v{vG}, {XR:#x}, v{vG}")
        A("s_mov_b64 exec, vcc")
    A(gtext0)
    A("s_waitcnt vmcnt(0)")
    A("s_branch L_chk0")
    LBL("L_ok0")
    if local or gsplit:
        A("s_mov_b64 exec, -1")
    STAMPX("gok")
    C("sum over the 4 row blocks (lane bits 4,3); lane bit 5 = column half / matrix")
    A(f"v_permlane16_swap_b32 v{G0}, v{G0 + 2}")
    A(f"v_add_f32 v10, v{G0}, v{G0 + 2}")
    A(f"v_and_b32 v12, 15, v{LANE}")
    A("v_lshlrev_b32 v12, 5, v12")
    dpp("v_add_f32", 10, 10, 10, "row_ror:8")
    if gsplit:
        A("s_mov_b64 exec, s[100:101]")
    A(f"ds_write_b32 v29, v10 offset:{QF}")
    A("s_mov_b64 exec, 1")
    A(f"ds_add_u32 v28, v27 offset:{CNT + 4}")
    A("s_mov_b64 exec, -1")
    for _ in range(qdelay):
        issue_next()
    A(f"s_mov_b32 s58, {SPIN_MAX * 16}")
    LBL("L_qwait")
    A(f"ds_read_b32 v11, v28 offset:{CNT + 4}")
    A(f"ds_read_b128 v[16:19], v12 offset:{QF}")
    A(f"ds_read_b128 v[20:23], v12 offset:{QF + 16}")
    if not gsplit:
        A(f"ds_read_b32 v24, v31 offset:{QF + 512}")
        A(f"ds_read_b32 v25, v31 offset:{QF + 768}")
    A("s_waitcnt lgkmcnt(0)")
    A("v_readfirstlane_b32 s56, v11")
    A("s_cmp_eq_u32 s56, 8")
    A("s_cbranch_scc1 L_qok")
    A("s_sub_u32 s58, s58, 1")
    A("s_cbranch_scc0 L_qwait")
    LBL("L_qok")
    STAMPX("qok")
    for k in range(4):
        A(f"v_cvt_pk_bf16_f32 v{Q[k]}, v{16 + 2 * k}, v{17 + 2 * k}")
    pacing[0] = True
    C("scores")
    for grp in range(4):
        while f"K{4 * grp + 3}" not in vm:
            issue_next()
        need(f"K{4 * grp + 3}")
        for j in range(4):
            for t in range(4 * grp, 4 * grp + 4):
                src2 = "0" if j == 0 else f"v{AT[t]}"
                A(f"v_dot2_f32_bf16 v{AT[t]}, v{KR + 4 * t + j}, v{Q[j]}, {src2}")
    curchunk[0] = chunk
    C("GEGLU activation for this lane's hidden unit, interleaved with the transposing score reduction")
    if gsplit:
        A("s_nop 1")
        for t in range(8):
            dpp("v_add_f32", AT[t], AT[t], AT[t], "row_ror:8", bm=0x3)
            dpp("v_add_f32", AT[t], AT[t + 8], AT[t + 8], "row_ror:8", bm=0xC)
        for t in range(4):
            dpp("v_add_f32", AT[t], AT[t], AT[t], "row_half_mirror", bm=0x5)
            dpp("v_add_f32", AT[t], AT[t + 4], AT[t + 4], "row_half_mirror", bm=0xA)
        for t in range(3):
            dpp("v_add_f32", AT[t], AT[t], AT[t], "quad_perm:[2,3,0,1]")
        dpp("v_add_f32", AT[3], AT[3], AT[3], "quad_perm:[2,3,0,1]")
        A(f"v_cndmask_b32 v{AT[0]}, v{AT[0]}, v{AT[2]}, s[36:37]")
        A(f"v_cndmask_b32 v{AT[1]}, v{AT[1]}, v{AT[3]}, s[36:37]")
        A("s_nop 0")
        dpp("v_add_f32", AT[0], AT[0], AT[0], "quad_perm:[1,0,3,2]")
        dpp("v_add_f32", AT[1], AT[1], AT[1], "quad_perm:[1,0,3,2]")
        A(f"v_cndmask_b32 v10, v{AT[0]}, v{AT[1]}, s[38:39]")
        A("v_cvt_pk_bf16_f32 v10, v10, v10")
    else:
        A("v_cvt_pk_bf16_f32 v24, v24, v25")
        A("v_lshlrev_b32 v26, 16, v24")
        A("v_and_b32 v25, 0xffff0000, v24")
        A("v_mul_f32 v27, v26, v26")
        A("v_mul_f32 v27, v27, v26")
        A("v_mov_b32 v28, v26")
        A("v_fmac_f32 v28, 0x3d372713, v27")
        A("v_mul_f32 v28, 0xc0135761, v28")
        A("v_exp_f32 v28, v28")
        for t in range(8):
            dpp("v_add_f32", AT[t], AT[t], AT[t], "row_ror:8", bm=0x3)
            dpp("v_add_f32", AT[t], AT[t + 8], AT[t + 8], "row_ror:8", bm=0xC)
        A("v_add_f32 v28, 1.0, v28")
        A("v_rcp_f32 v28, v28")
        for t in range(4):
            dpp("v_add_f32", AT[t], AT[t], AT[t], "row_half_mirror", bm=0x5)
            dpp("v_add_f32", AT[t], AT[t + 4], AT[t + 4], "row_half_mirror", bm=0xA)
        A("v_mul_f32 v28, v26, v28")
        A("v_cvt_pk_bf16_f32 v28, v28, v28")
        for t in range(4):
            dpp("v_add_f32", AT[t], AT[t], AT[t], "quad_perm:[2,3,0,1]")
        A("v_lshlrev_b32 v28, 16, v28")
        A(f"v_cndmask_b32 v{AT[0]}, v{AT[0]}, v{AT[2]}, s[36:37]")
        A(f"v_cndmask_b32 v{AT[1]}, v{AT[1]}, v{AT[3]}, s[36:37]")
        A("v_mul_f32 v28, v28, v25")
        A(f"v_cmp_ge_u32 vcc, s93, v{vR}")
        dpp("v_add_f32", AT[0], AT[0], AT[0], "quad_perm:[1,0,3,2]")
        dpp("v_add_f32", AT[1], AT[1], AT[1], "quad_perm:[1,0,3,2]")
        A("v_cndmask_b32 v28, 0, v28, vcc")
        A(f"v_cndmask_b32 v10, v{AT[0]}, v{AT[1]}, s[38:39]")
        A("v_cvt_pk_bf16_f32 v28, v28, v28")
        A("v_cvt_pk_bf16_f32 v10, v10, v10")
        for r in range(4):
            A(f"v_and_b32 v{AH + r}, v28, v{ME[r]}")
    A("v_lshlrev_b32 v10, 16, v10")
    A("v_mul_f32 v10, 0x3db504f3, v10")
    A("v_cvt_pk_bf16_f32 v10, v10, v10")
    A("v_lshlrev_b32 v10, 16, v10")
    A("v_mov_b32 v14, v10")
    A(f"s_lshl_b32 s56, s{sS}, 7")
    A(f"s_lshl_b32 s57, s{sW}, 4")
    row_reduce("v_max_f32", [14])
    cross_reduce("v_max_f32", 14, 12)
    A("s_add_u32 s56, s56, s57")
    A("s_add_u32 s56, s56, s98")
    A("v_mov_b32 v11, s56")
    A(f"v_mov_b32 v13, s{sTA}")
    A(f"v_mov_b32 v15, s{sTB}")
    A(f"s_lshl_b32 s56, s{sW}, 2")
    A("v_mov_b32 v17, s56")
    if local:
        A(f"v_xor_b32 v18, {XM:#x}, v11")
    A("v_mov_b32 v30, 1")
    A("v_mov_b32 v31, 0")
    A("v_sub_f32 v10, v10, v14")
    A("v_mul_f32 v10, 0x3fb8aa3b, v10")
    A("v_exp_f32 v10, v10")
    A("s_nop 0")
    A("v_mov_b32 v12, v10")
    A("v_cvt_pk_bf16_f32 v10, v10, v10")
    A("s_nop 0")
    for t in range(16):
        if t < 4:
            dpp("v_add_f32", 12, 12, 12, steps[t])
        if t == 4:
            A("v_mov_b32 v16, v12")
        if t == 5:
            A("v_permlane16_swap_b32 v16, v12")
            A("v_add_f32 v12, v16, v12")
            A("v_mov_b32 v16, v12")
        if t == 6:
            A("v_permlane32_swap_b32 v16, v12")
            A("v_add_f32 v12, v16, v12")
        if t == 7:
            RAW("s_mov_b64 exec, 1")
            if local:
                issue("STMLA", "global_store_dwordx4 v18, v[12:15], s[30:31]", window=False)
            issue("STML", f"global_store_dwordx4 v11, v[12:15], s[30:31] {hpol}", window=False)
            RAW(f"ds_write_b32 v17, v14 offset:{MX}")
            RAW(f"ds_add_u32 v31, v30 offset:{CNT + 8}")
            RAW("s_mov_b64 exec, -1")
            STAMPX("stml")
        for r in range(4):
            dpp("v_and_b32", KR + 4 * t + r, 10, ME[r], f"row_newbcast:{t}")
    C("addresses for the tail")
    A(f"v_lshrrev_b32 v16, 4, v{LANE}")
    A(f"v_and_b32 v17, 15, v{LANE}")
    A(f"s_mul_i32 s56, s{sW}, {OPS}")
    A("v_lshl_add_u32 v18, v17, 5, s56")
    A("v_lshl_add_u32 v18, v16, 4, v18")
    A(f"v_and_b32 v17, 7, v{LANE}")
    A(f"v_lshrrev_b32 v19, 3, v{LANE}")
    A(f"s_lshl_b32 s56, s{sW}, 6")
    A("v_lshl_add_u32 v20, v19, 3, s56")
    A(f"v_mov_b32 v21, {OPS}")
    A("v_mad_u32_u24 v21, v17, v21, v20")
    A(f"v_mov_b32 v22, {YPS}")
    A("v_mad_u32_u24 v22, v17, v22, v20")
    A(f"s_lshl_b32 s56, s{sS}, 10")
    A(f"s_lshl_b32 s57, s{sW}, 7")
    A("s_add_u32 s56, s56, s57")
    A("s_add_u32 s56, s56, s97")
    A("v_lshl_add_u32 v23, v19, 4, s56")
    A(f"s_lshl_b32 s56, s{sH}, 9")
    A("s_add_u32 s56, s56, s57")
    A("s_add_u32 s56, s56, s99")
    A("v_lshl_add_u32 v24, v19, 4, s56")
    A("v_lshrrev_b32 v25, 1, v16")
    A(f"v_mul_u32_u24 v25, {YPS}, v25")
    A(f"s_mul_i32 s56, s{sW}, {2 * YPS}")
    A("v_add_u32 v25, s56, v25")
    A("v_and_b32 v26, 1, v16")
    A("v_lshl_add_u32 v25, v26, 4, v25")
    A("v_lshl_add_u32 v25, v17, 5, v25")
    A(f"v_and_b32 v26, 31, v{LANE}")
    A(f"s_lshl_b32 s57, s{sH}, 4")
    A("s_add_u32 s56, s57, s99")
    if csx:
        A(f"s_sub_u32 s57, s95, s{sS}")
        A("s_lshl_b32 s57, s57, 14")
        A("s_add_u32 s56, s56, s57")
    A("v_lshl_add_u32 v26, v26, 9, s56")
    A("v_mov_b32 v27, s42")
    if local:
        A(f"v_xor_b32 v19, {XO_:#x}, v23")
    A("v_lshlrev_b32 v28, 5, v17")
    A(f"s_lshl_b32 s56, s{sS}, 3")
    A("s_mov_b64 s[60:61], 0xff")
    A("s_lshl_b64 s[60:61], s[60:61], s56")
    A("s_not_b64 s[62:63], s[60:61]")
    A(f"s_lshl_b64 s[50:51], 1, s{sH}")
    A("s_andn2_b64 s[50:51], s[52:53], s[50:51]")
    if csx:
        A("s_mov_b64 s[50:51], s[52:53]")
    A(f"v_and_b32 v29, 15, v{LANE}")
    A(f"v_mul_u32_u24 v29, {YPS}, v29")
    A(f"s_lshl_b32 s56, s{sH}, 3")
    A("v_add_u32 v29, s56, v29")
    pacing[0] = False
    STAMPX("pvstart")
    pend.append(("XO", f"global_load_dword v{XO}, v27, s[8:9]"))
    if touch_out:
        pend.append(("TO", f"global_load_dword v{XP}, v27, s[26:27]"))

    wdone = [False]

    def wblock():
        C("softmax weights of the 8 slices from the 64 per-wave records")
        A(f"s_mov_b32 s58, {SPIN_MAX}")
        need("MLG")
        LBL("L_chk1")
        A(f"v_cmp_ne_u32 vcc, s{sTA}, v{MLG + 1}")
        A(f"v_cmp_ne_u32 s[56:57], s{sTB}, v{MLG + 3}")
        if ml2:
            A("s_or_b64 vcc, vcc, s[56:57]")
            A(f"v_cmp_ne_u32 s[56:57], s{sTA}, v61")
        A("s_or_b64 vcc, vcc, s[56:57]")
        A("s_cbranch_scc0 L_ok1")
        A("s_sub_u32 s58, s58, 1")
        A("s_cbranch_scc1 L_ok1")
        if ml_block and slm:
            A(f"s_sleep {slm}")
        if local:
            A(f"v_xor_b32 v{vMLG}, {XM:#x}, v{vMLG}")
            A("s_mov_b64 exec, vcc")
        if ml2:
            A(ml2text)
        A(mltext)
        A("s_waitcnt vmcnt(0)")
        A("s_branch L_chk1")
        LBL("L_ok1")
        if local:
            A("s_mov_b64 exec, -1")
        dpp("v_max_f32", 16, MLG + 2, MLG + 2, steps[0])
        A("s_nop 1")
        row_reduce("v_max_f32", [16], steps[1:3])
        dpp("v_max_f32", 10, 16, 16, "row_ror:8")
        cross_reduce("v_max_f32", 10, 11)
        A(f"v_sub_f32 v11, v{MLG + 2}, v10")
        A("v_sub_f32 v10, v16, v10")
        A("v_mul_f32 v11, 0x3fb8aa3b, v11")
        A("v_mul_f32 v10, 0x3fb8aa3b, v10")
        A("v_exp_f32 v11, v11")
        A("v_exp_f32 v10, v10")
        A(f"v_mul_f32 v11, v11, v{MLG}")
        A("s_nop 1")
        row_reduce("v_add_f32", [11])
        cross_reduce("v_add_f32", 11, 16)
        A("v_rcp_f32 v11, v11")
        A(f"s_mov_b32 s58, {SPIN_MAX}")
        A(f"v_mul_f32 v{vWT}, v10, v11")

    def mxblock():
        C("workgroup max from the 8 wave maxima; this wave's factor")
        A(f"s_mov_b32 s58, {SPIN_MAX * 16}")
        LBL("L_mxwait")
        A(f"ds_read_b32 v16, v31 offset:{CNT + 8}")
        A(f"ds_read_b128 v[48:51], v31 offset:{MX}")
        A(f"ds_read_b128 v[52:55], v31 offset:{MX + 16}")
        A("s_waitcnt lgkmcnt(0)")
        A("v_readfirstlane_b32 s56, v16")
        A("s_cmp_eq_u32 s56, 8")
        A("s_cbranch_scc1 L_mxok")
        A("s_sub_u32 s58, s58, 1")
        A("s_cbranch_scc0 L_mxwait")
        LBL("L_mxok")
        A("v_max3_f32 v48, v48, v49, v50")
        A("v_max3_f32 v51, v51, v52, v53")
        A("v_max3_f32 v48, v48, v54, v55")
        A("v_max_f32 v48, v48, v51")
        A("v_sub_f32 v10, v14, v48")
        A("v_mul_f32 v10, 0x3fb8aa3b, v10")
        A("v_exp_f32 v30, v10")
        STAMPX("mlok")

    for t in range(16):
        while f"V{t}" not in vm:
            issue_next()
        while pend and len(vm) - max(done[0], vm.index(f"V{t}")) < wineff(pend[0][0]):
            issue(*pend.pop(0), window=False)
        if t == mx_at:
            mxblock()
        if pre2 and t == pre2:
            C("wave 4 reads the y lines once, long before they are written")
            A(f"s_cmp_lg_u32 s{sW}, 4")
            A("s_cbranch_scc1 L_nopre2")
            A("s_mov_b64 exec, s[50:51]")
            if fast2:
                A(f"v_xor_b32 v56, {XY:#x}, v26")
                A(f"global_load_dwordx4 v[56:59], v56, s[30:31] {hpol}")
            else:
                A(f"global_load_dwordx4 v[56:59], v26, s[30:31] {hpol}")
            A("s_mov_b64 exec, -1")
            LBL("L_nopre2")
        if t == pre1:
            A("s_mov_b64 exec, s[62:63]")
            issue("PRE1", f"global_load_dwordx4 v[60:63], v{vOG}, s[30:31] {hpol}", window=False)
            A("s_mov_b64 exec, -1")
        if ml_block and not wdone[0] and "MLG" in vm and vm.index("MLG") < max(done[0] + 1, vm.index(f"V{t}")):
            assert vm.index("STML") < vm.index("MLG")
            wblock()
            wdone[0] = True
        need(f"V{t}")
        c = "0" if t == 0 else f"v[{DPV}:{DPV + 3}]"
        A(f"v_mfma_f32_16x16x32_bf16 v[{DPV}:{DPV + 3}], v[{KR + 4 * t}:{KR + 4 * t + 3}], v[{VR + 4 * t}:{VR + 4 * t + 3}], {c}")
        if t == 14:
            while pend:
                issue(*pend.pop(0), window=False)
    assert not pend and (wdone[0] or not ml_block)
    STAMPX("vland")
    GF = 48
    gftext = f"global_load_dwordx4 v[{GF}:{GF + 3}], v{vG}, s[30:31] offset:512 {hpol}"
    if gsplit:
        A("s_mov_b64 exec, s[100:101]")
        issue("GF", gftext, window=False)
        A("s_mov_b64 exec, -1")
    if w_tail == 1:
        for w in wl:
            issue(*w, window=False)
    A("s_mov_b64 exec, s[52:53]")
    A(f"s_nop {0 if gsplit else 3 if w_tail == 1 else 6}")
    for r in range(4):
        A(f"v_mul_f32 v{DPV + r}, v30, v{DPV + r}")
    A(f"ds_write_b128 v18, v[{DPV}:{DPV + 3}] offset:{OP}")
    A("s_mov_b64 exec, -1")
    A("s_waitcnt lgkmcnt(0)")
    A("s_barrier")
    A(f"ds_read_b64 v[16:17], v21 offset:{OP}")
    A("s_waitcnt lgkmcnt(0)")
    dpp("v_add_f32", 14, 17, 17, steps[0])
    dpp("v_add_f32", 12, 16, 16, steps[0])
    A("s_nop 0")
    row_reduce("v_add_f32", [14, 12], steps[1:3])
    A("s_mov_b64 exec, s[54:55]")
    if local:
        issue("STOA", "global_store_dwordx4 v19, v[12:15], s[30:31]", window=False)
    if not local:
        issue("STO", f"global_store_dwordx4 v23, v[12:15], s[30:31] {hpol}", window=False)
    OG = G1
    if w_tail == 2:
        A("s_mov_b64 exec, -1")
        for w in wl:
            issue(*w, window=False)
    A("s_mov_b64 exec, s[62:63]")
    if first_delay:
        A(f"s_sleep {first_delay}")
    issue("OG", f"global_load_dwordx4 v[{KR}:{KR + 3}], v{vOG}, s[30:31] {hpol}", window=False)
    A("s_mov_b64 exec, -1")
    if fast2:
        A(f"v_xor_b32 v30, {XY:#x}, v24")
        A(f"v_xor_b32 v31, {XY:#x}, v26")
    C("own slice: taken from registers, never re-read from memory")
    A("ds_bpermute_b32 v10, v28, v12")
    A("ds_bpermute_b32 v11, v28, v14")
    STAMPX("opub")
    if gsplit:
        C("gate/up partial sums -> GEGLU -> operand for the w_down tile (in the shadow of the o hand-off)")
        A(f"s_mov_b32 s58, {SPIN_MAX}")
        need("GF")
        A("s_mov_b64 exec, s[100:101]")
        LBL("L_chkf")
        A(f"v_cmp_ne_u32 vcc, s{sTA}, v{GF + 1}")
        A(f"v_cmp_ne_u32 s[56:57], s{sTB}, v{GF + 3}")
        A("s_or_b64 vcc, vcc, s[56:57]")
        A("s_cbranch_scc0 L_okf")
        A("s_sub_u32 s58, s58, 1")
        A("s_cbranch_scc1 L_okf")
        A(gftext)
        A("s_waitcnt vmcnt(0)")
        A("s_branch L_chkf")
        LBL("L_okf")
        A("s_mov_b64 exec, -1")
        dpp("v_add_f32", GF, GF, GF, "row_ror:8")
        dpp("v_add_f32", GF + 2, GF + 2, GF + 2, "row_ror:8")
        A("s_nop 1")
        A(f"v_permlane16_swap_b32 v{GF}, v{GF + 2}")
        A(f"v_add_f32 v52, v{GF}, v{GF + 2}")
        A("v_mov_b32 v53, v52")
        A("s_nop 1")
        A("v_permlane32_swap_b32 v53, v52")
        A("v_cvt_pk_bf16_f32 v54, v53, v52")
        A("v_lshlrev_b32 v53, 16, v54")
        A("v_and_b32 v52, 0xffff0000, v54")
        A("v_mul_f32 v55, v53, v53")
        A("v_mul_f32 v55, v55, v53")
        A("v_mov_b32 v54, v53")
        A("v_fmac_f32 v54, 0x3d372713, v55")
        A("v_mul_f32 v54, 0xc0135761, v54")
        A("v_exp_f32 v54, v54")
        A(f"v_cmp_ge_u32 vcc, s93, v{vR}")
        A("v_add_f32 v54, 1.0, v54")
        A("v_rcp_f32 v54, v54")
        A("s_nop 0")
        A("v_mul_f32 v54, v53, v54")
        A("v_cvt_pk_bf16_f32 v54, v54, v54")
        A("v_lshlrev_b32 v54, 16, v54")
        A("v_mul_f32 v54, v54, v52")
        A("v_cvt_pk_bf16_f32 v54, v54, v54")
        A("v_mov_b32 v55, v54")
        A("s_nop 1")
        A("v_permlane16_swap_b32 v55, v54")
        A("s_nop 1")
        for g in range(4):
            A(f"v_mov_b32_dpp v53, v55 row_newbcast:{g} row_mask:{1 << g:#x} bank_mask:0x3")
            A(f"v_mov_b32_dpp v53, v54 row_newbcast:{g} row_mask:{1 << g:#x} bank_mask:0xc")
        A("v_cndmask_b32 v53, 0, v53, vcc")
        for r in range(4):
            A(f"v_and_b32 v{AH + r}, v53, v{ME[r]}")
        A("s_nop 0")
    C("w_down part of the output projection while the hand-off is in flight")
    need("WD")
    A(f"v_mfma_f32_16x16x32_bf16 v[{DY}:{DY + 3}], v[{AH}:{AH + 3}], v[{WD}:{WD + 3}], 0")
    A("s_mov_b64 exec, s[60:61]")
    A("s_waitcnt lgkmcnt(0)")
    if ml_block and not local:
        A(f"v_mul_f32 v{OG}, v{vWT}, v10")
        A(f"v_mul_f32 v{OG + 2}, v{vWT}, v11")
    else:
        A(f"v_mov_b32 v{OG}, v10")
        A(f"v_mov_b32 v{OG + 2}, v11")
    A("s_mov_b64 exec, -1")
    if not ml_block:
        wblock()
    else:
        A(f"s_mov_b32 s58, {SPIN_MAX}")
    STAMPX("wts")
    if local:
        assert P1 == 1
        A(f"s_mov_b32 s58, {nfast}")
        poll("OA", P1, KR, vOG, 62, OG, OG + 2, sl1, 1, fall=True)
        A(f"s_mov_b32 s58, {SPIN_MAX}")
        A(f"v_xor_b32 v{vOG}, {XO_:#x}, v{vOG}")
        C("copy B (write-through): published here before falling back to it, or right after a fast success")
        A("s_mov_b64 exec, s[54:55]")
        A(f"global_store_dwordx4 v23, v[12:15], s[30:31] {hpol}")
        poll("O", P1, KR, vOG, 62, OG, OG + 2, sl1, 0)
        A("s_mov_b64 exec, s[54:55]")
        A(f"global_store_dwordx4 v23, v[12:15], s[30:31] {hpol}")
        A("s_mov_b64 exec, -1")
    else:
        poll("O", P1, KR, vOG, 62, OG, OG + 2, sl1, 1, scale=vWT if ml_block else None)
    STAMPX("ook")
    if ml_block and not local:
        A(f"v_permlane32_swap_b32 v{OG}, v{OG + 2}")
        A(f"v_add_f32 v10, v{OG}, v{OG + 2}")
    else:
        A(f"v_mul_f32 v10, v{vWT}, v{OG}")
        A(f"v_mul_f32 v11, v{vWT}, v{OG + 2}")
        A("s_nop 1")
        A("v_permlane32_swap_b32 v10, v11")
        A("v_add_f32 v10, v10, v11")
    cross_reduce("v_add_f32", 10, 11, swaps=("16",))
    A("s_nop 1")
    dpp("v_add_f32", 10, 10, 10, "row_ror:8")
    A("v_cvt_pk_bf16_f32 v10, v10, v10")
    A("s_nop 1")
    for k in range(2):
        for b4 in range(2):
            for b in range(2):
                p = 4 * b4 + 2 * b + k
                A(f"v_mov_b32_dpp v{16 + k}, v10 row_newbcast:{p} row_mask:{(0x5, 0xa)[b4]:#x} bank_mask:{(0x3, 0xc)[b]:#x}")
    for k in range(2):
        for r in range(4):
            A(f"v_and_b32 v{48 + 4 * k + r}, v{16 + k}, v{ME[r]}")
    A("s_nop 0")
    A(f"v_mfma_f32_16x16x32_bf16 v[{DY}:{DY + 3}], v[48:51], v[{WO0}:{WO0 + 3}], v[{DY}:{DY + 3}]")
    A(f"v_mfma_f32_16x16x32_bf16 v[{DY}:{DY + 3}], v[52:55], v[{WO1}:{WO1 + 3}], v[{DY}:{DY + 3}]")
    A("s_mov_b64 exec, s[40:41]")
    A("s_nop 6")
    A(f"ds_write_b128 v25, v[{DY}:{DY + 3}] offset:{YP}")
    A("s_mov_b64 exec, -1")
    A("s_waitcnt lgkmcnt(0)")
    A("s_barrier")
    STAMPX("bar5")
    A(f"s_cmp_ge_u32 s{sW}, 4")
    A("s_cbranch_scc1 L_final")
    A(f"ds_read_b64 v[16:17], v22 offset:{YP}")
    A(f"ds_read_b64 v[18:19], v22 offset:{YP + 8 * YPS}")
    A("s_waitcnt lgkmcnt(0)")
    A("v_add_f32 v14, v17, v19")
    A("v_add_f32 v12, v16, v18")
    A("s_nop 0")
    row_reduce("v_add_f32", [14, 12], steps[:3])
    A("s_mov_b64 exec, s[54:55]")
    if fast2:
        C("copy A: plain store (seen through the shared L2 by a reader on the same die); copy B: write-through")
        A("global_store_dwordx4 v30, v[12:15], s[30:31]")
    A(f"global_store_dwordx4 v24, v[12:15], s[30:31] {hpol}")
    if stamps:
        A("s_mov_b64 exec, -1")
        STAMPX("end")
        A("s_branch L_stamps")
    else:
        A("s_endpgm")
    LBL("L_final")
    A(f"s_cmp_lg_u32 s{sW}, 4")
    if stamps:
        STAMPX("end")
        A("s_cbranch_scc1 L_stamps")
    else:
        A("s_cbranch_scc1 L_end")
    A(f"s_mov_b32 s58, {SPIN_MAX}")
    C("own workgroup's piece straight from LDS (lanes 32..47), zero elsewhere")
    if not csx:
        A(f"ds_read_b64 v[20:21], v29 offset:{YP}")
    A("v_mov_b32 v16, 0")
    A("v_mov_b32 v18, 0")
    if not csx:
        A("s_mov_b32 exec_lo, 0")
        A("s_mov_b32 exec_hi, 0xffff")
        A("s_waitcnt lgkmcnt(0)")
        A("v_mov_b32 v16, v20")
        A("v_mov_b32 v18, v21")
    if fd2:
        A(f"s_sleep {fd2}")
    if fast2:
        A(f"s_mov_b32 s58, {nfast}")
        poll("YA", P2, KR + 32, 31, 50, 16, 18, sl2, 0, fall=True)
        A(f"s_mov_b32 s58, {SPIN_MAX}")
    poll("Y", P2, KR + 32, 26, 50, 16, 18, sl2, 0)
    STAMPX("yok")
    A("s_nop 0")
    A("v_permlane32_swap_b32 v16, v18")
    A("v_add_f32 v16, v16, v18")
    A(f"v_lshlrev_b32 v10, 16, v{XO}")
    A(f"v_and_b32 v11, 0xffff0000, v{XO}")
    row_reduce("v_add_f32", [16])
    cross_reduce("v_add_f32", 16, 17, swaps=("16",))
    A("s_nop 0")
    A("v_readlane_b32 s56, v16, 32")
    A("v_add_f32 v10, v10, v16")
    A("s_nop 0")
    A("v_add_f32 v11, s56, v11")
    A("v_cvt_pk_bf16_f32 v10, v10, v11")
    A("s_mov_b64 exec, 1")
    A(f"global_store_dword v27, v10, s[26:27] {opol}")
    A("s_cmp_lg_u32 s2, 0")
    A("s_cbranch_scc1 L_nowbump")
    A(f"v_mov_b32 v12, {W_OFF}")
    A(f"global_store_dword v12, v13, s[30:31] {hpol}")
    LBL("L_nowbump")
    if stamps:
        A("s_mov_b64 exec, -1")
        STAMPX("end")
        LBL("L_stamps")
        ns = len(stamp_idx)
        nq = (ns + 1) // 2
        A("s_waitcnt lgkmcnt(0)")
        A("s_lshl_b32 s56, s2, 3")
        A(f"s_add_u32 s56, s56, s{sW}")
        A(f"s_mul_i32 s56, s56, {nq * 16}")
        A(f"s_add_u32 s56, s56, {STAMP:#x}")
        A("v_mov_b32 v10, s56")
        A("s_mov_b64 exec, 1")
        for q in range(nq):
            for j in range(4):
                k = 4 * q + j
                if k >= 2 * ns:
                    k -= 2
                A(f"v_mov_b32 v{12 + j}, s{SB + k}")
            A(f"global_store_dwordx4 v10, v[12:15], s[30:31] offset:{q * 16}")
            A("s_nop 2")
        print("stamps per wave:", nq * 2, list(stamp_idx), file=sys.stderr)
    LBL("L_end")
    A("s_endpgm")
    LBL("L_codeend")
    L.append('.section .rodata,"a"')
    L.append(".p2align 6")
    L.append(f".amdhsa_kernel {NAME}_kernel")
    L.append("  .amdhsa_next_free_vgpr 256")
    L.append("  .amdhsa_next_free_sgpr 102")
    L.append("  .amdhsa_accum_offset 256")
    L.append("  .amdhsa_group_segment_fixed_size 0")
    L.append("  .amdhsa_kernarg_size 96")
    L.append("  .amdhsa_user_sgpr_count 2")
    L.append("  .amdhsa_user_sgpr_kernarg_segment_ptr 1")
    L.append("  .amdhsa_system_sgpr_workgroup_id_x 1")
    L.append("  .amdhsa_float_denorm_mode_32 3")
    L.append(".end_amdhsa_kernel")
    return "\n".join(L) + "\n"


if __name__ == "__main__":
    out = sys.argv[1]
    kw = {}
    for a in sys.argv[2:]:
        k, v = a.split("=")
        try:
            v = int(v)
        except ValueError:
            pass
        kw[k] = v
    open(out, "w").write(gen(**kw))
```

```python
import sys

NAME = "parallel_sum__sliding_block_cached__geglu_ffn__decode"
HEADER = """; Kernarg layout for this problem (96 bytes, ptrs only, base s[0:1]):
;
; Hand-offs are 16-byte pieces {value, tagA, value, tagB} written with sc1 (write-through) stores and read with
"""

W_OFF = 0
REC0 = 0x40000
OREC = 0x100000
MLR = 0x180000
YREC = 0x1A0000
XY = 0x60000
STAMP = 512 << 20
P0P = 0
QF = 8192
CNT = 9216
MX = 9248
OP = 9472
OPS = 544
YP = OP + 8 * OPS
YPS = 288
LDS_BYTES = YP + 16 * YPS

C_TAG = 0x9E3779B9
C_TAGB = 0x5BD1E995
SPIN_MAX = 1 << 18


def gen(pol="nt", stamps="", D=5, g_after=11, ml_after=11, k_pre=4, chunk=64, chunk1=30, qdelay=3, sl1=2, sl2=1,
        slm=4, mx_at=12, pre2=6, prios="K0:2,K1:1,K2:0", boost=2, pn=4, nfast=40, cpf=8, lnfast=1, sl1a=0, thr1=16, sl2a=0, thr2=4, kx=0, prot=-1, wmode=0, tlb=0, gpack=1, opack=0, gclamp=1, mlagg=0):
    L = []
    hpol = "sc1"
    stamps = [s for s in stamps.split(",") if s]
    vm = []
    done = [0]
    pend = []
    cnt = [0]
    pacing = [False]
    curchunk = [chunk1]
    priomap = dict(x.split(":") for x in prios.split(",") if x)
    stamp_idx = {}
    SB = 64

    def RAW(s):
        L.append("    " + s)

    def A(s):
        RAW(s)
        if pacing[0]:
            cnt[0] += 1
            if cnt[0] >= curchunk[0] and pend:
                issue_next()

    def C(s):
        L.append("    ; " + s)

    def LBL(s):
        L.append(s + ":")

    def STAMPX(tag):
        if tag in stamps:
            i = stamp_idx.setdefault(tag, len(stamp_idx))
            RAW(f"s_memrealtime s[{SB + 2 * i}:{SB + 1 + 2 * i}]")

    def need(name):
        i = vm.index(name)
        if i >= done[0]:
            RAW(f"s_waitcnt vmcnt({len(vm) - 1 - i})")
            done[0] = i + 1

    def issue(name, text, window=True):
        if window and len(vm) - done[0] >= D:
            RAW(f"s_waitcnt vmcnt({D - 1})")
            done[0] = len(vm) - (D - 1)
        RAW(text)
        vm.append(name)
        cnt[0] = 0
        if name in priomap:
            RAW(f"s_setprio {priomap[name]}")
        STAMPX("i" + name)

    def issue_next():
        issue(*pend.pop(0))

    def dpp(op, d, s0, s1, ctrl, rm=0xF, bm=0xF):
        A(f"{op}_dpp v{d}, v{s0}, v{s1} {ctrl} row_mask:{rm:#x} bank_mask:{bm:#x}")

    steps = ["quad_perm:[1,0,3,2]", "quad_perm:[2,3,0,1]", "row_half_mirror", "row_mirror"]

    def row_reduce(op, regs, st=steps, tail=True):
        for k, s in enumerate(st):
            for r in regs:
                dpp(op, r, r, r, s)
            if len(regs) < 3 and (tail or k + 1 < len(st)):
                A(f"s_nop {2 - len(regs)}")

    def cross_reduce(op, r, t, swaps=("16", "32")):
        for sw in swaps:
            A(f"v_mov_b32 v{t}, v{r}")
            A("s_nop 1")
            A(f"v_permlane{sw}_swap_b32 v{t}, v{r}")
            A(f"{op} v{r}, v{t}, v{r}")

    def poll(tag, base, vaddr, spend, f0, f1, sleep, pre_issued, done_lbl, scale=None, far=0, thr=0):
        A(f"s_mov_b64 exec, s[{spend}:{spend + 1}]")
        if pre_issued:
            A(f"s_branch L_skip{tag}")
        LBL(f"L_poll{tag}")
        A(f"global_load_dwordx4 v[{base}:{base + 3}], v{vaddr}, s[30:31] {hpol}")
        if pre_issued:
            LBL(f"L_skip{tag}")
        A("s_waitcnt vmcnt(0)")
        A(f"v_cmp_eq_u32 vcc, s{sTA}, v{base + 1}")
        A(f"v_cmp_eq_u32 s[56:57], s{sTB}, v{base + 3}")
        A("s_and_b64 exec, vcc, s[56:57]")
        if scale is None:
            A(f"v_mov_b32 v{f0}, v{base}")
            A(f"v_mov_b32 v{f1}, v{base + 2}")
        else:
            A(f"v_mul_f32 v{f0}, v{scale}, v{base}")
            A(f"v_mul_f32 v{f1}, v{scale}, v{base + 2}")
        A(f"s_andn2_b64 s[{spend}:{spend + 1}], s[{spend}:{spend + 1}], exec")
        A(f"s_cbranch_scc0 {done_lbl}")
        A(f"s_mov_b64 exec, s[{spend}:{spend + 1}]")
        if far:
            A("s_bcnt1_i32_b64 s59, exec")
            A(f"s_cmp_le_u32 s59, {thr}")
            A(f"s_cbranch_scc1 L_near{tag}")
            A(f"s_sleep {far}")
            LBL(f"L_near{tag}")
        if sleep:
            A(f"s_sleep {sleep}")
        A("s_sub_u32 s58, s58, 1")
        A(f"s_cbranch_scc0 L_poll{tag}")

    L.append(HEADER + f"; @launch grid=(256,1,1) block=(512,1,1) lds={LDS_BYTES}")
    L.append('.amdgcn_target "amdgcn-amd-amdhsa--gfx950"')
    L.append(".text")
    L.append(f".globl {NAME}_kernel")
    L.append(".p2align 8")
    L.append(f".type {NAME}_kernel,@function")
    L.append(f"{NAME}_kernel:")

    LANE = 1
    ME = [2, 3, 4, 5]
    Q = [6, 7, 8, 9]
    KOFF = list(range(32, 48))
    AT = list(range(48, 64))
    KR, VR = 64, 128
    X, XP, XO = 192, 196, 197
    WQA, WQB, WGA, WGB = 200, 204, 208, 212
    G0, G1 = 216, 220
    WO0, WO1, WD = 224, 228, 232
    AH, DPV, DY = 236, 240, 244
    vWO, vWD, vOG, vMLG, vG, vWT, vR = 248, 249, 250, 251, 252, 253, 254
    sH, sS, sW = 3, 4, 5
    sTA, sTB = 33, 34

    def kload(t):
        return (f"K{t}", f"global_load_dwordx4 v[{KR + 4 * t}:{KR + 4 * t + 3}], v{KOFF[t]}, s[10:11] {pol}")

    def vload(t):
        return (f"V{t}", f"global_load_dwordx4 v[{VR + 4 * t}:{VR + 4 * t + 3}], v{KOFF[t]}, s[12:13] {pol}")

    def koffs(lo, hi):
        for t in range(max(lo, 1), hi):
            if prot >= 0 and t % pn == 0:
                A(f"v_add_u32 v{KOFF[t]}, {8 * pn * 8192:#x}, v{KOFF[t - pn]}")
                A(f"v_bfi_b32 v{KOFF[t]}, s51, v{KOFF[t]}, v{KOFF[0]}")
            elif prot >= 0:
                A(f"v_add_u32 v{KOFF[t]}, {(t % pn) * 8192:#x}, v{KOFF[t - t % pn]}")
            else:
                A(f"v_add_u32 v{KOFF[t]}, {(t // pn) * 8 * pn * 8192 + (t % pn) * 8192:#x}, v{KOFF[0]}")

    gtext0 = f"global_load_dwordx4 v[{G0}:{G0 + 3}], v{vG}, s[30:31] {hpol}"
    gtext = gtext0 if not gpack else "s_mov_b64 exec, s[100:101]\n    " + gtext0 + "\n    s_mov_b64 exec, -1"
    MLG = G0
    mltext = f"global_load_dwordx4 v[{MLG}:{MLG + 3}], v{vMLG}, s[30:31] {hpol}"
    wl = [("WD", f"global_load_dwordx4 v[{WD}:{WD + 3}], v{vWD}, s[24:25] {pol}"),
          ("WO0", f"global_load_dwordx4 v[{WO0}:{WO0 + 3}], v{vWO}, s[16:17] {'offset:-4096 ' if opack else ''}{pol}"),
          ("WO1", f"global_load_dwordx4 v[{WO1}:{WO1 + 3}], v{vWO}, s[16:17] {'' if opack else 'offset:2048 '}{pol}")]

    STAMPX("entry")
    A("s_cmp_ge_u32 s2, 256")
    A("s_cbranch_scc1 L_end")
    A("s_load_dwordx16 s[8:23], s[0:1], 0")
    A("s_load_dwordx8 s[24:31], s[0:1], 64")
    if cpf:
        C("a few workgroups read the kernel's own code once, so that later instruction fetches find it in L2")
        A("s_getpc_b64 s[90:91]")
        LBL("L_pc")
        if cpf > 1:
            A(f"s_and_b32 s3, s2, {(cpf - 1) << 3:#x}")
            A("s_cbranch_scc1 L_nocpf")
        A("v_lshlrev_b32 v10, 4, v0")
        A("v_min_u32 v10, L_codeend - L_pc - 16, v10")
        issue("CPF", "global_load_dwordx4 v[56:59], v10, s[90:91]", False)
        if cpf > 1:
            LBL("L_nocpf")
    if prios:
        A("s_setprio 3")
    C("h = b>>3, s = b&7 = 4*ch + rb; lane fields: v13 = b (bit 3), v14 = e (bits 2:0)")
    A(f"v_and_b32 v{LANE}, 63, v0")
    A(f"s_lshr_b32 s{sH}, s2, 3")
    A(f"s_and_b32 s{sS}, s2, 7")
    A("v_bfe_u32 v13, v0, 3, 1")
    A("v_and_b32 v14, 7, v0")
    C("weight row of this lane: 128 rb + 16 w + 4 g + 2 b = 128 rb + 4 (tid >> 4) + 2 b")
    A("s_and_b32 s6, s2, 3")
    A("s_lshl_b32 s6, s6, 7")
    A("v_lshrrev_b32 v15, 4, v0")
    A("v_lshl_add_u32 v15, v15, 2, s6")
    A("v_lshl_add_u32 v21, v13, 1, v15")
    A("v_xor_b32 v23, 2, v21")
    A(f"v_lshlrev_b32 v16, 4, v{LANE}")
    A("v_lshlrev_b32 v17, 1, v21")
    C("wq offset: row*8192 + 256h + 128ch + 16e ; 256h + 128ch = 32*(b & ~3)")
    A("s_andn2_b32 s43, s2, 3")
    A("s_lshl_b32 s43, s43, 5")
    A("v_lshl_add_u32 v19, v14, 4, s43")
    A("v_lshl_add_u32 v19, v21, 13, v19")
    A("v_add_u32 v20, 0x2000, v19")
    C("hidden units of the group: heads 0..10 own 64, heads 11..31 own 32 (43 blocks of 32)")
    A(f"s_lshl_b32 s44, s{sH}, 6")
    A(f"s_lshl_b32 s45, s{sH}, 5")
    A("s_addk_i32 s45, 352")
    A(f"s_cmp_lt_u32 s{sH}, 11")
    A("s_cselect_b32 s44, s44, s45")
    A("s_cselect_b32 s47, 7, 3")
    A("s_lshl_b32 s46, s44, 1")
    A("v_min_u32 v22, s47, v14")
    A("v_lshl_add_u32 v22, v22, 4, s46")
    A("s_movk_i32 s48, 2752")
    A("v_mad_u32_u24 v22, v23, s48, v22")
    A("s_bitcmp0_b32 s2, 2")
    A("s_waitcnt lgkmcnt(0)")
    STAMPX("kernarg")
    issue("X", f"global_load_dwordx4 v[{X}:{X + 3}], v16, s[8:9]", False)
    issue("XP", f"global_load_dword v{XP}, v17, s[8:9]", False)
    A("s_cselect_b64 s[20:21], s[20:21], s[22:23]")
    issue("WQA", f"global_load_dwordx4 v[{WQA}:{WQA + 3}], v19, s[14:15] {pol}", False)
    issue("WQB", f"global_load_dwordx4 v[{WQB}:{WQB + 3}], v20, s[14:15] {pol}", False)
    issue("WGA", f"global_load_dwordx4 v[{WGA}:{WGA + 3}], v22, s[20:21] {pol}", False)
    issue("WGB", f"global_load_dwordx4 v[{WGB}:{WGB + 3}], v22, s[20:21] offset:2752 {pol}", False)
    C("LDS counters start at zero; K/V offsets")
    A("v_mov_b32 v24, 0")
    A("v_mov_b32 v25, 0")
    A("v_mov_b32 v26, 0")
    A(f"ds_write_b96 v24, v[24:26] offset:{CNT}")
    A(f"s_lshl_b32 s49, s{sH}, 23")
    if kx:
        A(f"s_mul_i32 s50, s{sH}, {kx}") if kx > 0 else A(f"s_lshr_b32 s50, s{sH}, {-kx}")
        A(f"s_add_u32 s50, s50, s{sS}")
        A("s_and_b32 s50, s50, 7")
        A(f"s_mul_i32 s50, s50, {pn * 8192}")
    else:
        A(f"s_mul_i32 s50, s{sS}, {pn * 8192}")
    A("s_add_u32 s49, s49, s50")
    if prot >= 0:
        A(f"s_lshr_b32 s50, s{sH}, {prot}")
        A(f"s_and_b32 s50, s50, {16 // pn - 1}")
        A(f"s_mul_i32 s50, s50, {8 * pn * 8192}")
        A("s_add_u32 s49, s49, s50")
        A("s_mov_b32 s51, 0xfffff")
    A(f"s_add_u32 s49, s49, {28672 * 256}")
    A(f"v_lshl_add_u32 v{KOFF[0]}, v0, 4, s49")
    koffs(1, k_pre)
    A("s_waitcnt lgkmcnt(0)")
    A("s_barrier")
    for t in range(k_pre):
        issue(*kload(t), window=False)
    A(f"s_load_dword s32, s[30:31], {W_OFF}")
    A("v_lshrrev_b32 v10, 6, v0")
    A(f"v_lshrrev_b32 v11, 4, v{LANE}")
    A(f"v_readfirstlane_b32 s{sW}, v10")
    koffs(k_pre, 16)
    if tlb:
        C("one early read in each buffer that is first used late (warms the address translation)")
        A("s_mov_b64 s[56:57], s[12:13]")
        A("s_mov_b32 s58, s49")
        A(f"s_lshl_b32 s59, s{sH}, 17")
        A(f"s_cmp_eq_u32 s{sW}, 1")
        A("s_cselect_b64 s[56:57], s[16:17], s[56:57]")
        A("s_cselect_b32 s58, s59, s58")
        A("s_lshl_b32 s59, s44, 10")
        A(f"s_cmp_eq_u32 s{sW}, 2")
        A("s_cselect_b64 s[56:57], s[24:25], s[56:57]")
        A("s_cselect_b32 s58, s59, s58")
        A(f"s_cmp_eq_u32 s{sW}, {4 if tlb == 1 else 9}")
        A("s_cselect_b64 s[56:57], s[26:27], s[56:57]")
        A("s_cselect_b32 s58, 0, s58")
        A("v_mov_b32 v24, s58")
        A(f"s_cmp_gt_u32 s{sW}, 4")
        A("s_cbranch_scc1 L_notlb")
        A("s_mov_b64 exec, 1")
        A(f"global_load_dword v255, v24, s[56:57] {pol}")
        A("s_mov_b64 exec, -1")
        LBL("L_notlb")
    A(f"s_lshl_b32 s7, s{sW}, 4")
    A("s_lshl3_add_u32 s93, s47, 7")
    C("lane masks")
    A("s_mov_b32 s36, 0xcccccccc")
    A("s_mov_b32 s37, 0xcccccccc")
    A("s_mov_b32 s38, 0xaaaaaaaa")
    A("s_mov_b32 s39, 0xaaaaaaaa")
    A("s_mov_b32 s40, 0x00ff00ff")
    A("s_mov_b32 s41, 0xff00ff00")
    A("s_mov_b32 s52, -1")
    A("s_mov_b32 s53, 0")
    A("s_mov_b32 s54, 0x01010101")
    A("s_mov_b32 s55, 0x01010101")
    C("v2..v5: halfword e of the 8-element operand selected in lane (.,e)")
    A(f"v_and_b32 v24, 1, v{LANE}")
    A("v_lshlrev_b32 v24, 4, v24")
    A("v_mov_b32 v25, 0xffff")
    A("v_lshlrev_b32 v24, v24, v25")
    for r in range(4):
        m = (0x03030303 << (2 * r)) & 0xFFFFFFFF
        A(f"s_mov_b32 s56, {m:#x}")
        A(f"s_mov_b32 s57, {m:#x}")
        A(f"v_cndmask_b32 v{ME[r]}, 0, v24, s[56:57]")
    C("output byte offset 128 s + 4 h")
    A(f"s_lshl_b32 s57, s{sS}, 7")
    A(f"s_lshl2_add_u32 s42, s{sH}, s57")
    C("wo offset: (128h + 16w + 8(g&1) + 4b + (g>>1))*1024 + 128s + 16e")
    A("v_and_b32 v24, 1, v11")
    if opack:
        C("(packed o records: row = 128h + 16w + 8b + 4k + 2(g&1) + (g>>1); the register points at k = 1)")
        A("v_lshlrev_b32 v24, 1, v24")
        A("v_lshl_add_u32 v24, v13, 3, v24")
    else:
        A("v_lshlrev_b32 v24, 3, v24")
        A("v_lshl_add_u32 v24, v13, 2, v24")
    A("v_lshrrev_b32 v25, 1, v11")
    A("v_add_u32 v24, v24, v25")
    A(f"s_lshl_b32 s56, s{sH}, 7")
    A("s_add_u32 s56, s56, s7")
    if opack:
        A("s_add_u32 s56, s56, 4")
    A("v_add_u32 v24, s56, v24")
    A("v_lshl_add_u32 v25, v14, 4, s57")
    A(f"v_lshl_add_u32 v{vWO}, v24, 10, v25")
    C("w_down: r = 8w + 2g + b ; row = first unit + min(r, last)")
    A("v_lshl_add_u32 v24, v11, 1, v13")
    A(f"s_lshl_b32 s56, s{sW}, 3")
    A(f"v_add_u32 v{vR}, s56, v24")
    A(f"v_min_u32 v24, s93, v{vR}")
    A("v_add_u32 v26, s44, v24")
    A(f"v_lshl_add_u32 v{vWD}, v26, 10, v25")
    A("v_lshlrev_b32 v31, 2, v24")
    C("hand-off record bases: s96 rec0(h), s97 orec(h), s98 ml(h), s99 yrec(s)")
    A(f"s_lshl_b32 s56, s{sH}, 13")
    A(f"s_add_u32 s96, s56, {REC0:#x}")
    A(f"s_add_u32 s97, s56, {OREC:#x}")
    A(f"s_lshl_b32 s56, s{sH}, 10")
    A(f"s_add_u32 s98, s56, {MLR:#x}")
    A(f"s_lshl_b32 s56, s{sS}, 14")
    A(f"s_add_u32 s99, s56, {YREC:#x}")
    C("gather offsets")
    A(f"v_lshrrev_b32 v24, 3, v{LANE}")
    A(f"s_lshl_b32 s57, s{sW}, 7")
    A("v_lshlrev_b32 v25, 10, v24")
    A("v_lshl_add_u32 v25, v14, 4, v25")
    A("v_add_u32 v25, s57, v25")
    if gpack:
        C("packed phase-0 records: 512 B per producer, wave w reads pieces 4w..4w+3 (lanes with e < 4)")
        A("v_lshlrev_b32 v26, 9, v24")
        A("v_lshl_add_u32 v26, v14, 4, v26")
        if gclamp:
            C("(groups with 32 hidden units do not need the last line: waves 6,7 re-read what wave 5 reads)")
            A("s_lshr_b32 s56, s47, 1")
            A("s_add_u32 s56, s56, 4")
            A(f"s_min_u32 s56, s56, s{sW}")
            A("s_lshl_b32 s56, s56, 6")
        else:
            A(f"s_lshl_b32 s56, s{sW}, 6")
        A(f"s_lshl_b32 s96, s{sH}, 12")
        A(f"s_add_u32 s96, s96, {REC0:#x}")
        A("s_add_u32 s56, s56, s96")
        A(f"v_add_u32 v{vG}, s56, v26")
        A("s_mov_b32 s100, 0x0f0f0f0f")
        A("s_mov_b32 s101, 0x0f0f0f0f")
    else:
        A(f"v_add_u32 v{vG}, s96, v25")
    if opack:
        assert gpack
        A(f"v_add_u32 v{vOG}, {OREC - REC0:#x}, v{vG}")
        A(f"s_add_u32 s97, s96, {OREC - REC0:#x}")
    else:
        A(f"v_add_u32 v{vOG}, s97, v25")
    A(f"v_lshl_add_u32 v{vMLG}, v{LANE}, 4, s98")
    C("LDS write address of the phase-0 partials")
    A("v_lshrrev_b32 v24, 1, v11")
    A(f"s_lshl_b32 s56, s{sW}, 10")
    A("v_lshl_add_u32 v25, v24, 9, s56")
    A("v_and_b32 v26, 1, v11")
    A("v_lshl_add_u32 v25, v26, 4, v25")
    A("v_lshl_add_u32 v30, v14, 5, v25")
    A("v_xor_b32 v26, v24, v13")
    A("v_lshl_add_u32 v30, v26, 8, v30")
    C("LDS write address of the gathered q/gate/up value")
    A("v_and_b32 v24, 1, v11")
    if gpack:
        A("v_lshl_add_u32 v24, v13, 1, v24")
        A("v_lshl_add_u32 v24, v14, 2, v24")
    else:
        A("v_lshl_add_u32 v24, v14, 1, v24")
    A(f"v_lshrrev_b32 v25, 5, v{LANE}")
    A("v_lshl_add_u32 v24, v25, 6, v24")
    A(f"s_lshr_b32 s56, s{sW}, 2")
    A("s_lshl_b32 s56, s56, 6")
    A("s_add_u32 s56, s56, s7")
    A("v_add_lshl_u32 v29, v24, s56, 2")

    pend.extend(kload(t) for t in range(k_pre, 16))
    pend.insert(g_after + 1 - k_pre, ("G", gtext))
    pend.extend(vload(t) for t in range(16))
    pend.insert([n for n, _ in pend].index(f"V{ml_after}") + 1, ("MLG", mltext))

    C("layernorm")
    need("XP")
    STAMPX("x")
    for k in range(4):
        A(f"v_lshlrev_b32 v{10 + 2 * k}, 16, v{X + k}")
        A(f"v_and_b32 v{11 + 2 * k}, 0xffff0000, v{X + k}")
    if lnfast:
        C("mean and variance from sums of (x - x[0]) and (x - x[0])^2 (shifted, so no cancellation)")
        A("v_readfirstlane_b32 s56, v10")
        A("s_nop 1")
        for k in range(8):
            A(f"v_subrev_f32 v{10 + k}, s56, v{10 + k}")
        A("v_add_f32 v18, v10, v11")
        A("v_mul_f32 v19, v10, v10")
        A("v_add_f32 v20, v12, v13")
        A("v_mul_f32 v21, v11, v11")
        for k in range(2, 8, 2):
            if k > 2:
                A(f"v_add_f32 v18, v18, v{10 + k}")
                A(f"v_add_f32 v20, v20, v{11 + k}")
            A(f"v_fmac_f32 v19, v{10 + k}, v{10 + k}")
            A(f"v_fmac_f32 v21, v{11 + k}, v{11 + k}")
        A("v_add_f32 v18, v18, v20")
        A("v_add_f32 v19, v19, v21")
        A("s_nop 0")
        row_reduce("v_add_f32", [18, 19], tail=False)
        for sw in ("16", "32"):
            A("v_mov_b32 v20, v18")
            A("v_mov_b32 v21, v19")
            A("s_nop 0")
            A(f"v_permlane{sw}_swap_b32 v20, v18")
            A(f"v_permlane{sw}_swap_b32 v21, v19")
            A("v_add_f32 v18, v20, v18")
            A("v_add_f32 v19, v21, v19")
        A("v_mul_f32 v18, 0x3b000000, v18")
        A("v_mul_f32 v19, 0x3b000000, v19")
        A("v_fma_f32 v19, -v18, v18, v19")
        A("v_add_f32 v18, s56, v18")
        A("v_max_f32 v19, 0, v19")
    else:
        A("v_add_f32 v18, v10, v11")
        A("v_add_f32 v19, v12, v13")
        A("v_add_f32 v20, v14, v15")
        A("v_add_f32 v21, v16, v17")
        A("v_add_f32 v18, v18, v19")
        A("v_add_f32 v20, v20, v21")
        A("v_add_f32 v18, v18, v20")
        A("s_nop 1")
        row_reduce("v_add_f32", [18])
        cross_reduce("v_add_f32", 18, 19)
        A("v_mul_f32 v18, 0x3b000000, v18")
        for k in range(8):
            A(f"v_sub_f32 v{10 + k}, v{10 + k}, v18")
        A("v_mul_f32 v19, v10, v10")
        A("v_mul_f32 v20, v11, v11")
        for k in range(2, 8, 2):
            A(f"v_fmac_f32 v19, v{10 + k}, v{10 + k}")
            A(f"v_fmac_f32 v20, v{11 + k}, v{11 + k}")
        A("v_add_f32 v19, v19, v20")
        A("s_nop 1")
        row_reduce("v_add_f32", [19])
        cross_reduce("v_add_f32", 19, 20)
        A("v_mul_f32 v19, 0x3b000000, v19")
    C("bf16 rounding after every step, as the reference")
    A("v_cvt_pk_bf16_f32 v20, v18, v19")
    A("v_lshlrev_b32 v18, 16, v20")
    A("v_and_b32 v19, 0xffff0000, v20")
    A("v_add_f32 v19, 0x3727c5ac, v19")
    A("v_cvt_pk_bf16_f32 v19, v19, v19")
    A("v_lshlrev_b32 v19, 16, v19")
    A("v_sqrt_f32 v19, v19")
    A(f"v_lshlrev_b32 v21, 16, v{XP}")
    A(f"v_and_b32 v22, 0xffff0000, v{XP}")
    A("v_cvt_pk_bf16_f32 v19, v19, v19")
    A("v_lshlrev_b32 v19, 16, v19")
    A("v_rcp_f32 v20, v19")
    A("v_sub_f32 v21, v21, v18")
    A("v_sub_f32 v22, v22, v18")
    A("v_cvt_pk_bf16_f32 v21, v21, v22")
    A("v_and_b32 v22, 0xffff0000, v21")
    A("v_lshlrev_b32 v21, 16, v21")
    A("v_mul_f32 v10, v21, v20")
    A("v_mul_f32 v11, v22, v20")
    A("v_fma_f32 v12, -v10, v19, v21")
    A("v_fma_f32 v13, -v11, v19, v22")
    A("v_fmac_f32 v10, v12, v20")
    A("v_fmac_f32 v11, v13, v20")
    A("v_cvt_pk_bf16_f32 v10, v10, v10")
    A("v_cvt_pk_bf16_f32 v11, v11, v11")
    for r in range(4):
        A(f"v_and_b32 v{20 + r}, v10, v{ME[r]}")
    for r in range(4):
        A(f"v_and_b32 v{24 + r}, v11, v{ME[r]}")
    need("WGB")
    STAMPX("p0w")
    DQ, DG = 48, 52
    A(f"v_mfma_f32_16x16x32_bf16 v[{DQ}:{DQ + 3}], v[20:23], v[{WQA}:{WQA + 3}], 0")
    A(f"v_mfma_f32_16x16x32_bf16 v[{DG}:{DG + 3}], v[20:23], v[{WGA}:{WGA + 3}], 0")
    A(f"v_mfma_f32_16x16x32_bf16 v[{DQ}:{DQ + 3}], v[24:27], v[{WQB}:{WQB + 3}], v[{DQ}:{DQ + 3}]")
    A(f"v_mfma_f32_16x16x32_bf16 v[{DG}:{DG + 3}], v[24:27], v[{WGB}:{WGB + 3}], v[{DG}:{DG + 3}]")
    nfill = 0
    while len(vm) - done[0] < D and pend[0][0] != "G":
        issue_next()
        nfill += 1
    A(f"s_nop {max(0, 7 - nfill)}")
    for r in range(4):
        A(f"v_cndmask_b32 v{DQ + r}, v{DG + r}, v{DQ + r}, s[40:41]")
    A(f"ds_write_b128 v30, v[{DQ}:{DQ + 3}] offset:{P0P}")
    A("v_mov_b32 v28, 0")
    A("v_mov_b32 v27, 1")
    A("s_mov_b64 exec, 1")
    A(f"ds_add_rtn_u32 v10, v28, v27 offset:{CNT}")
    A("s_mov_b64 exec, -1")
    A("s_waitcnt lgkmcnt(0)")
    A("v_readfirstlane_b32 s56, v10")
    A(f"s_add_u32 s{sTA}, s32, {C_TAG:#x}")
    A(f"s_xor_b32 s{sTB}, s{sTA}, {C_TAGB:#x}")
    STAMPX("bar1")
    A("s_cmp_lg_u32 s56, 7")
    A("s_cbranch_scc1 L_nopub0")
    C("the wave that arrived last sums the 16 partials and publishes 64 pieces")
    C("(its store is one extra vm op on this path only: counted waits can only get stricter)")
    for name, text in pend[:boost]:
        RAW(text)
    A(f"v_lshlrev_b32 v10, 3, v{LANE}")
    B0 = 192
    for p in range(16):
        A(f"ds_read_b64 v[{B0 + 2 * p}:{B0 + 2 * p + 1}], v10 offset:{P0P + p * 512}")
    if gpack:
        A(f"s_lshl_b32 s56, s{sS}, 9")
        A("s_add_u32 s56, s56, s96")
        A(f"v_lshl_add_u32 v11, v{LANE}, 3, s56")
        A(f"v_mov_b32 v19, s{sTA}")
        A("s_mov_b32 s56, 0x07060503")
        A("s_mov_b32 s57, 0x07060502")
        A("s_mov_b32 s59, 0x07060501")
    else:
        A(f"s_lshl_b32 s56, s{sS}, 10")
        A("s_add_u32 s56, s56, s96")
        A(f"v_lshl_add_u32 v11, v{LANE}, 4, s56")
        A(f"v_mov_b32 v13, s{sTA}")
        A(f"v_mov_b32 v15, s{sTB}")
    A("s_waitcnt lgkmcnt(0)")
    n = 16
    while n > 1:
        n //= 2
        for p in range(n):
            for c in range(2):
                dst = B0 + 2 * p + c if n > 1 else 12 + 2 * c
                A(f"v_add_f32 v{dst}, v{B0 + 2 * p + c}, v{B0 + 2 * (p + n) + c}")
    if gpack:
        C("4 sums per piece: each rounded to its top 24 bits, the 4th spread over the low bytes of the first three")
        A("v_add_u32 v12, 0x80, v12")
        A("v_add_u32 v14, 0x80, v14")
        A("s_nop 0")
        A("v_mov_b32_dpp v13, v12 quad_perm:[1,0,3,2] row_mask:0xf bank_mask:0xf")
        A("v_mov_b32_dpp v15, v14 quad_perm:[1,0,3,2] row_mask:0xf bank_mask:0xf")
        A("v_perm_b32 v16, v12, v15, s56")
        A("v_perm_b32 v17, v14, v15, s57")
        A("v_perm_b32 v18, v13, v15, s59")
        A("s_andn2_b64 exec, exec, s[38:39]")
        A(f"global_store_dwordx4 v11, v[16:19], s[30:31] {hpol}")
        A("s_mov_b64 exec, -1")
    else:
        A(f"global_store_dwordx4 v11, v[12:15], s[30:31] {hpol}")
    if boost:
        A("s_branch L_join0")
    LBL("L_nopub0")
    if boost:
        d0 = done[0]
        for _ in range(boost):
            issue_next()
        done[0] = d0
        LBL("L_join0")
    while pend[0][0] != "G":
        issue_next()
    issue_next()
    STAMPX("gissue")
    while len(vm) - 1 - vm.index("G") < D - 1:
        issue_next()
    A(f"s_mov_b32 s58, {SPIN_MAX}")
    need("G")
    if gpack:
        A("s_mov_b64 exec, s[100:101]")
    LBL("L_chk0")
    if gpack:
        A(f"v_cmp_ne_u32 vcc, s{sTA}, v{G0 + 3}")
        A("s_and_b64 vcc, vcc, exec")
    else:
        A(f"v_cmp_ne_u32 vcc, s{sTA}, v{G0 + 1}")
        A(f"v_cmp_ne_u32 s[56:57], s{sTB}, v{G0 + 3}")
        A("s_or_b64 vcc, vcc, s[56:57]")
    A("s_cbranch_scc0 L_ok0")
    A("s_sub_u32 s58, s58, 1")
    A("s_cbranch_scc1 L_ok0")
    A(gtext0)
    A("s_waitcnt vmcnt(0)")
    A("s_branch L_chk0")
    LBL("L_ok0")
    STAMPX("gok")
    C("sum over the 4 row blocks (lane bits 4,3); lane bit 5 = column half / matrix")
    if gpack:
        A("s_mov_b64 exec, -1")
        A("s_mov_b32 s56, 0x04000c0c")
        A("s_mov_b32 s57, 0x0706000c")
        A(f"v_perm_b32 v{G0 + 3}, v{G0}, v{G0 + 1}, s56")
        A(f"v_and_b32 v{G0}, 0xffffff00, v{G0}")
        A(f"v_and_b32 v{G0 + 1}, 0xffffff00, v{G0 + 1}")
        A(f"v_perm_b32 v{G0 + 3}, v{G0 + 3}, v{G0 + 2}, s57")
        A(f"v_and_b32 v{G0 + 2}, 0xffffff00, v{G0 + 2}")
        A(f"v_permlane16_swap_b32 v{G0}, v{G0 + 1}")
        A(f"v_add_f32 v10, v{G0}, v{G0 + 1}")
        A(f"v_permlane16_swap_b32 v{G0 + 2}, v{G0 + 3}")
        A(f"v_add_f32 v11, v{G0 + 2}, v{G0 + 3}")
        A(f"v_and_b32 v12, 15, v{LANE}")
        dpp("v_add_f32", 10, 10, 10, "row_ror:8", bm=0x3)
        dpp("v_add_f32", 10, 11, 11, "row_ror:8", bm=0xC)
        A("v_lshlrev_b32 v12, 5, v12")
        A("s_mov_b64 exec, s[100:101]")
    else:
        A(f"v_permlane16_swap_b32 v{G0}, v{G0 + 2}")
        A(f"v_add_f32 v10, v{G0}, v{G0 + 2}")
        A(f"v_and_b32 v12, 15, v{LANE}")
        A("v_lshlrev_b32 v12, 5, v12")
        dpp("v_add_f32", 10, 10, 10, "row_ror:8")
    A(f"ds_write_b32 v29, v10 offset:{QF}")
    A("s_mov_b64 exec, 1")
    A(f"ds_add_u32 v28, v27 offset:{CNT + 4}")
    A("s_mov_b64 exec, -1")
    for _ in range(qdelay):
        issue_next()
    A(f"s_mov_b32 s58, {SPIN_MAX * 16}")
    LBL("L_qwait")
    A(f"ds_read_b32 v11, v28 offset:{CNT + 4}")
    A(f"ds_read_b128 v[16:19], v12 offset:{QF}")
    A(f"ds_read_b128 v[20:23], v12 offset:{QF + 16}")
    A(f"ds_read_b32 v24, v31 offset:{QF + 512}")
    A(f"ds_read_b32 v25, v31 offset:{QF + 768}")
    A("s_waitcnt lgkmcnt(0)")
    A("v_readfirstlane_b32 s56, v11")
    A("s_cmp_eq_u32 s56, 8")
    A("s_cbranch_scc1 L_qok")
    A("s_sub_u32 s58, s58, 1")
    A("s_cbranch_scc0 L_qwait")
    LBL("L_qok")
    STAMPX("qok")
    for k in range(4):
        A(f"v_cvt_pk_bf16_f32 v{Q[k]}, v{16 + 2 * k}, v{17 + 2 * k}")
    pacing[0] = True
    C("scores")
    for grp in range(4):
        while f"K{4 * grp + 3}" not in vm:
            issue_next()
        need(f"K{4 * grp + 3}")
        for j in range(4):
            for t in range(4 * grp, 4 * grp + 4):
                src2 = "0" if j == 0 else f"v{AT[t]}"
                A(f"v_dot2_f32_bf16 v{AT[t]}, v{KR + 4 * t + j}, v{Q[j]}, {src2}")
    curchunk[0] = chunk
    C("GEGLU activation for this lane's hidden unit, interleaved with the transposing score reduction")
    A("v_cvt_pk_bf16_f32 v24, v24, v25")
    A("v_lshlrev_b32 v26, 16, v24")
    A("v_and_b32 v25, 0xffff0000, v24")
    A("v_mul_f32 v27, v26, v26")
    A("v_mul_f32 v27, v27, v26")
    A("v_mov_b32 v28, v26")
    A("v_fmac_f32 v28, 0x3d372713, v27")
    A("v_mul_f32 v28, 0xc0135761, v28")
    A("v_exp_f32 v28, v28")
    for t in range(8):
        dpp("v_add_f32", AT[t], AT[t], AT[t], "row_ror:8", bm=0x3)
        dpp("v_add_f32", AT[t], AT[t + 8], AT[t + 8], "row_ror:8", bm=0xC)
    A("v_add_f32 v28, 1.0, v28")
    A("v_rcp_f32 v28, v28")
    for t in range(4):
        dpp("v_add_f32", AT[t], AT[t], AT[t], "row_half_mirror", bm=0x5)
        dpp("v_add_f32", AT[t], AT[t + 4], AT[t + 4], "row_half_mirror", bm=0xA)
    A("v_mul_f32 v28, v26, v28")
    A("v_cvt_pk_bf16_f32 v28, v28, v28")
    for t in range(4):
        dpp("v_add_f32", AT[t], AT[t], AT[t], "quad_perm:[2,3,0,1]")
    A("v_lshlrev_b32 v28, 16, v28")
    A(f"v_cndmask_b32 v{AT[0]}, v{AT[0]}, v{AT[2]}, s[36:37]")
    A(f"v_cndmask_b32 v{AT[1]}, v{AT[1]}, v{AT[3]}, s[36:37]")
    A("v_mul_f32 v28, v28, v25")
    A(f"v_cmp_ge_u32 vcc, s93, v{vR}")
    dpp("v_add_f32", AT[0], AT[0], AT[0], "quad_perm:[1,0,3,2]")
    dpp("v_add_f32", AT[1], AT[1], AT[1], "quad_perm:[1,0,3,2]")
    A("v_cndmask_b32 v28, 0, v28, vcc")
    A(f"v_cndmask_b32 v10, v{AT[0]}, v{AT[1]}, s[38:39]")
    A("v_cvt_pk_bf16_f32 v28, v28, v28")
    A("v_cvt_pk_bf16_f32 v10, v10, v10")
    for r in range(4):
        A(f"v_and_b32 v{AH + r}, v28, v{ME[r]}")
    C("lane (g,c) now holds the score of key g of tile c; scale, wave max, exp, wave sum")
    A("v_lshlrev_b32 v10, 16, v10")
    A("v_mul_f32 v10, 0x3db504f3, v10")
    A("v_cvt_pk_bf16_f32 v10, v10, v10")
    A("v_lshlrev_b32 v10, 16, v10")
    A("v_mov_b32 v14, v10")
    A(f"s_lshl_b32 s56, s{sS}, 7")
    A(f"s_lshl_b32 s57, s{sW}, 4")
    row_reduce("v_max_f32", [14], tail=False)
    cross_reduce("v_max_f32", 14, 12)
    mlpos = [0]
    if mlagg:
        A("s_add_u32 s56, s56, s98")
        A(f"v_lshlrev_b32 v18, 4, v{LANE}")
        A("v_add_u32 v11, s56, v18")
        A("v_mov_b32 v17, s57")
    else:
        A("s_add_u32 s56, s56, s57")
        A("s_add_u32 s56, s56, s98")
        A("v_mov_b32 v11, s56")
    A(f"v_mov_b32 v13, s{sTA}")
    A(f"v_mov_b32 v15, s{sTB}")
    if not mlagg:
        A(f"s_lshl_b32 s56, s{sW}, 2")
        A("v_mov_b32 v17, s56")
    A("v_mov_b32 v30, 1")
    A("v_mov_b32 v31, 0")
    A("v_sub_f32 v10, v10, v14")
    A("v_mul_f32 v10, 0x3fb8aa3b, v10")
    A("v_exp_f32 v10, v10")
    A("s_nop 0")
    A("v_mov_b32 v12, v10")
    A("v_cvt_pk_bf16_f32 v10, v10, v10")
    A("s_nop 0")
    for t in range(16):
        if t < 4:
            dpp("v_add_f32", 12, 12, 12, steps[t])
        if t == 4:
            A("v_mov_b32 v16, v12")
        if t == 5:
            A("v_permlane16_swap_b32 v16, v12")
            A("v_add_f32 v12, v16, v12")
            A("v_mov_b32 v16, v12")
        if t == 6:
            A("v_permlane32_swap_b32 v16, v12")
            A("v_add_f32 v12, v16, v12")
        if t == 7 and not mlagg:
            RAW("s_mov_b64 exec, 1")
            issue("STML", f"global_store_dwordx4 v11, v[12:15], s[30:31] {hpol}", window=False)
            RAW(f"ds_write_b32 v17, v14 offset:{MX}")
            RAW(f"ds_add_u32 v31, v30 offset:{CNT + 8}")
            RAW("s_mov_b64 exec, -1")
            STAMPX("stml")
        if t == 7 and mlagg:
            RAW("s_mov_b64 exec, 1")
            RAW(f"ds_write_b128 v17, v[12:15] offset:{MX}")
            RAW(f"ds_add_rtn_u32 v16, v31, v30 offset:{CNT + 8}")
            RAW("s_mov_b64 exec, -1")
        if t == 11 and mlagg:
            C("the wave that arrived last stores the workgroup's 8 records as one line (extra vm op on this path only)")
            RAW("s_waitcnt lgkmcnt(0)")
            RAW("v_readfirstlane_b32 s56, v16")
            RAW("s_cmp_lg_u32 s56, 7")
            RAW("s_cbranch_scc1 L_noml")
            RAW("s_mov_b64 exec, 0xff")
            RAW(f"ds_read_b128 v[20:23], v18 offset:{MX}")
            RAW("s_waitcnt lgkmcnt(0)")
            RAW(f"global_store_dwordx4 v11, v[20:23], s[30:31] {hpol}")
            RAW("s_mov_b64 exec, -1")
            LBL("L_noml")
            mlpos[0] = len(vm)
            STAMPX("stml")
        for r in range(4):
            dpp("v_and_b32", KR + 4 * t + r, 10, ME[r], f"row_newbcast:{t}")
    C("addresses for the tail")
    A(f"v_lshrrev_b32 v16, 4, v{LANE}")
    A(f"v_and_b32 v17, 15, v{LANE}")
    A(f"s_mul_i32 s56, s{sW}, {OPS}")
    A("v_lshl_add_u32 v18, v17, 5, s56")
    A("v_lshl_add_u32 v18, v16, 4, v18")
    A(f"v_mul_u32_u24 v29, {YPS}, v17")
    A(f"s_lshl_b32 s56, s{sH}, 3")
    A("v_add_u32 v29, s56, v29")
    A(f"v_and_b32 v17, 7, v{LANE}")
    A(f"v_lshrrev_b32 v19, 3, v{LANE}")
    A(f"s_lshl_b32 s56, s{sW}, 6")
    A("v_lshl_add_u32 v20, v19, 3, s56")
    A(f"v_mov_b32 v21, {OPS}")
    A("v_mad_u32_u24 v21, v17, v21, v20")
    A(f"v_mov_b32 v22, {YPS}")
    A("v_mad_u32_u24 v22, v17, v22, v20")
    if opack:
        A(f"s_lshl_b32 s56, s{sS}, 9")
        A(f"s_lshl_b32 s57, s{sW}, 6")
        A("s_add_u32 s56, s56, s57")
        A("s_add_u32 s56, s56, s97")
        A("v_lshl_add_u32 v23, v16, 4, s56")
        A(f"s_lshl_b32 s57, s{sW}, 7")
        A("s_mov_b32 s92, 0x07060503")
        A("s_mov_b32 s94, 0x07060502")
        A("s_mov_b32 s95, 0x07060501")
        A("s_mov_b32 s43, 0x04000c0c")
        A("s_mov_b32 s48, 0x0706000c")
        A("s_mov_b32 s44, 0x00010001")
        A("s_mov_b32 s45, 0x00010001")
        A(f"v_mov_b32 v59, s{sTA}")
    else:
        A(f"s_lshl_b32 s56, s{sS}, 10")
        A(f"s_lshl_b32 s57, s{sW}, 7")
        A("s_add_u32 s56, s56, s57")
        A("s_add_u32 s56, s56, s97")
        A("v_lshl_add_u32 v23, v19, 4, s56")
    A(f"s_lshl_b32 s56, s{sH}, 9")
    A("s_add_u32 s56, s56, s57")
    A("s_add_u32 s56, s56, s99")
    A("v_lshl_add_u32 v24, v19, 4, s56")
    A(f"v_xor_b32 v19, {XY:#x}, v24")
    A("v_lshrrev_b32 v25, 1, v16")
    A(f"v_mul_u32_u24 v25, {YPS}, v25")
    A(f"s_mul_i32 s56, s{sW}, {2 * YPS}")
    A("v_add_u32 v25, s56, v25")
    A("v_and_b32 v26, 1, v16")
    A("v_lshl_add_u32 v25, v26, 4, v25")
    A("v_lshl_add_u32 v25, v17, 5, v25")
    A(f"v_and_b32 v26, 31, v{LANE}")
    A(f"s_lshl4_add_u32 s56, s{sH}, s99")
    A("v_lshl_add_u32 v26, v26, 9, s56")
    A(f"v_xor_b32 v20, {XY:#x}, v26")
    A("v_mov_b32 v27, s42")
    A(f"v_lshlrev_b32 v28, {4 if mlagg else 6 if opack else 5}, v17")
    A(f"s_lshl_b32 s56, s{sS}, 3")
    A(f"s_lshl_b64 s[60:61], {0xf if opack else 0xff:#x}, s56")
    if opack:
        A("s_andn2_b64 s[62:63], s[100:101], s[60:61]")
    else:
        A("s_not_b64 s[62:63], s[60:61]")
    A(f"s_lshl_b64 s[46:47], 1, s{sH}")
    A("s_andn2_b64 s[50:51], s[52:53], s[46:47]")
    pacing[0] = False
    STAMPX("pvstart")
    pend.append(("XO", f"global_load_dword v{XO}, v27, s[8:9]"))

    def wblock():
        C("softmax weights of the 8 slices from the 64 per-wave records")
        A(f"s_mov_b32 s58, {SPIN_MAX}")
        need("MLG")
        LBL("L_chk1")
        A(f"v_cmp_ne_u32 vcc, s{sTA}, v{MLG + 1}")
        A(f"v_cmp_ne_u32 s[56:57], s{sTB}, v{MLG + 3}")
        A("s_or_b64 vcc, vcc, s[56:57]")
        A("s_cbranch_scc0 L_ok1")
        A("s_sub_u32 s58, s58, 1")
        A("s_cbranch_scc1 L_ok1")
        if slm:
            A(f"s_sleep {slm}")
        A(mltext)
        A("s_waitcnt vmcnt(0)")
        A("s_branch L_chk1")
        LBL("L_ok1")

    def wcalc():
        dpp("v_max_f32", 16, MLG + 2, MLG + 2, steps[0])
        A("s_nop 1")
        row_reduce("v_max_f32", [16], steps[1:3])
        dpp("v_max_f32", 10, 16, 16, "row_ror:8")
        cross_reduce("v_max_f32", 10, 11)
        A(f"v_sub_f32 v11, v{MLG + 2}, v10")
        A("v_sub_f32 v10, v16, v10")
        A("v_mul_f32 v11, 0x3fb8aa3b, v11")
        A("v_mul_f32 v10, 0x3fb8aa3b, v10")
        A("v_exp_f32 v11, v11")
        A("v_exp_f32 v10, v10")
        A(f"v_mul_f32 v11, v11, v{MLG}")
        A("s_nop 1")
        row_reduce("v_add_f32", [11], tail=False)
        cross_reduce("v_add_f32", 11, 16)
        A("v_rcp_f32 v11, v11")
        A("s_nop 0")
        A(f"v_mul_f32 v{vWT}, v10, v11")

    def mxblock():
        C("workgroup max from the 8 wave maxima; this wave's factor")
        A(f"s_mov_b32 s58, {SPIN_MAX * 16}")
        LBL("L_mxwait")
        A(f"ds_read_b32 v16, v31 offset:{CNT + 8}")
        if mlagg:
            A(f"ds_read_b32 v48, v28 offset:{MX + 8}")
        else:
            A(f"ds_read_b128 v[48:51], v31 offset:{MX}")
            A(f"ds_read_b128 v[52:55], v31 offset:{MX + 16}")
        A("s_waitcnt lgkmcnt(0)")
        A("v_readfirstlane_b32 s56, v16")
        A("s_cmp_eq_u32 s56, 8")
        A("s_cbranch_scc1 L_mxok")
        A("s_sub_u32 s58, s58, 1")
        A("s_cbranch_scc0 L_mxwait")
        LBL("L_mxok")
        if mlagg:
            row_reduce("v_max_f32", [48], steps[:3], tail=False)
            A(f"v_lshlrev_b32 v28, {2 if opack else 1}, v28")
        else:
            A("v_max3_f32 v48, v48, v49, v50")
            A("v_max3_f32 v51, v51, v52, v53")
            A("v_max3_f32 v48, v48, v54, v55")
            A("v_max_f32 v48, v48, v51")
        A("v_sub_f32 v10, v14, v48")
        A("v_mul_f32 v10, 0x3fb8aa3b, v10")
        A("v_exp_f32 v30, v10")

    wdone = False
    for t in range(16):
        while f"V{t}" not in vm:
            issue_next()
        while pend and len(vm) - max(done[0], vm.index(f"V{t}")) < D:
            issue(*pend.pop(0), window=False)
        if t == mx_at:
            mxblock()
        if pre2 and t == pre2:
            C("wave 4 reads the y lines once, long before they are written (one extra vm op on this path only)")
            A(f"s_cmp_lg_u32 s{sW}, 4")
            A("s_cbranch_scc1 L_nopre2")
            A("s_mov_b64 exec, s[50:51]")
            A(f"global_load_dwordx4 v[60:63], v20, s[30:31] {hpol}")
            A("s_mov_b64 exec, -1")
            LBL("L_nopre2")
        if not wdone and "MLG" in vm and vm.index("MLG") < max(done[0] + 1, vm.index(f"V{t}")):
            assert (mlpos[0] <= vm.index("MLG")) if mlagg else vm.index("STML") < vm.index("MLG")
            if wmode < 2:
                wblock()
            if wmode == 0:
                wcalc()
            wdone = True
        need(f"V{t}")
        c = "0" if t == 0 else f"v[{DPV}:{DPV + 3}]"
        A(f"v_mfma_f32_16x16x32_bf16 v[{DPV}:{DPV + 3}], v[{KR + 4 * t}:{KR + 4 * t + 3}], v[{VR + 4 * t}:{VR + 4 * t + 3}], {c}")
        if t == 14:
            while pend:
                issue(*pend.pop(0), window=False)
    assert not pend and wdone
    STAMPX("vland")
    for w in wl:
        issue(*w, window=False)
    A("s_mov_b64 exec, s[52:53]")
    A(f"s_mov_b32 s58, {SPIN_MAX}")
    A("s_nop 2")
    for r in range(4):
        A(f"v_mul_f32 v{DPV + r}, v30, v{DPV + r}")
    A(f"ds_write_b128 v18, v[{DPV}:{DPV + 3}] offset:{OP}")
    A("s_mov_b64 exec, -1")
    A("s_waitcnt lgkmcnt(0)")
    A("s_barrier")
    A(f"ds_read_b64 v[16:17], v21 offset:{OP}")
    A("s_waitcnt lgkmcnt(0)")
    dpp("v_add_f32", 14, 17, 17, steps[0])
    dpp("v_add_f32", 12, 16, 16, steps[0])
    A("s_nop 0")
    row_reduce("v_add_f32", [14, 12], steps[1:3], tail=False)
    if opack:
        assert wmode == 0
        PB = KR
        F = [G1, G1 + 1, G1 + 2, G1 + 3]

        def merge():
            A(f"v_perm_b32 v{F[3]}, v{PB}, v{PB + 1}, s43")
            A(f"v_mul_f32 v{F[0]}, v{vWT}, v{PB}")
            A(f"v_perm_b32 v{F[3]}, v{F[3]}, v{PB + 2}, s48")
            A(f"v_mul_f32 v{F[1]}, v{vWT}, v{PB + 1}")
            A(f"v_mul_f32 v{F[2]}, v{vWT}, v{PB + 2}")
            A(f"v_mul_f32 v{F[3]}, v{vWT}, v{F[3]}")

        A("s_nop 0")
        A("v_mov_b32_dpp v17, v14 row_ror:8 row_mask:0xf bank_mask:0xf")
        A("v_mov_b32_dpp v16, v12 row_ror:8 row_mask:0xf bank_mask:0xf")
        A("v_perm_b32 v56, v12, v17, s92")
        A("v_perm_b32 v57, v14, v17, s94")
        A("v_perm_b32 v58, v16, v17, s95")
        A("s_mov_b64 exec, s[44:45]")
        issue("STO", f"global_store_dwordx4 v23, v[56:59], s[30:31] {hpol}", window=False)
        A("s_mov_b64 exec, s[62:63]")
        issue("OG", f"global_load_dwordx4 v[{PB}:{PB + 3}], v{vOG}, s[30:31] {hpol}", window=False)
        A("s_mov_b64 exec, -1")
        C("own slice: taken from registers, never re-read from memory")
        A("ds_bpermute_b32 v48, v28, v56")
        A("ds_bpermute_b32 v49, v28, v57")
        A("ds_bpermute_b32 v50, v28, v58")
        STAMPX("opub")
        C("w_down part of the output projection while the hand-off is in flight")
        need("WD")
        A(f"v_mfma_f32_16x16x32_bf16 v[{DY}:{DY + 3}], v[{AH}:{AH + 3}], v[{WD}:{WD + 3}], 0")
        A("s_mov_b64 exec, s[60:61]")
        A("s_waitcnt lgkmcnt(0)")
        PB = 48
        merge()
        PB = KR
        A("s_mov_b64 exec, s[62:63]")
        A("s_branch L_skipO")
        LBL("L_pollO")
        A(f"global_load_dwordx4 v[{PB}:{PB + 3}], v{vOG}, s[30:31] {hpol}")
        LBL("L_skipO")
        A("s_waitcnt vmcnt(0)")
        A(f"v_cmpx_eq_u32 vcc, s{sTA}, v{PB + 3}")
        merge()
        A("s_andn2_b64 s[62:63], s[62:63], vcc")
        A("s_cbranch_scc0 L_doneO")
        A("s_mov_b64 exec, s[62:63]")
        if sl1:
            A(f"s_sleep {sl1}")
        A("s_sub_u32 s58, s58, 1")
        A("s_cbranch_scc0 L_pollO")
        LBL("L_doneO")
        A("s_mov_b64 exec, -1")
        STAMPX("ook")
        A(f"v_permlane32_swap_b32 v{F[0]}, v{F[1]}")
        A(f"v_permlane32_swap_b32 v{F[2]}, v{F[3]}")
        A(f"v_add_f32 v10, v{F[0]}, v{F[1]}")
        A(f"v_add_f32 v11, v{F[2]}, v{F[3]}")
        A("s_nop 1")
        A("v_permlane16_swap_b32 v10, v11")
        A("v_add_f32 v10, v10, v11")
        A("s_nop 1")
        dpp("v_add_f32", 10, 10, 10, "row_ror:8")
        A("v_cvt_pk_bf16_f32 v10, v10, v10")
        A("s_nop 1")
        for k in range(2):
            for b in range(2):
                A(f"v_mov_b32_dpp v{16 + k}, v10 row_newbcast:{2 * b + k} row_mask:0xf bank_mask:{(0x3, 0xc)[b]:#x}")
    else:
        A("s_mov_b64 exec, s[54:55]")
        issue("STO", f"global_store_dwordx4 v23, v[12:15], s[30:31] {hpol}", window=False)
        OG = G1
        A("s_mov_b64 exec, s[62:63]")
        issue("OG", f"global_load_dwordx4 v[{KR}:{KR + 3}], v{vOG}, s[30:31] {hpol}", window=False)
        A("s_mov_b64 exec, -1")
        C("own slice: taken from registers, never re-read from memory")
        A("ds_bpermute_b32 v10, v28, v12")
        A("ds_bpermute_b32 v11, v28, v14")
        STAMPX("opub")
        C("w_down part of the output projection while the hand-off is in flight")
        if not wmode:
            need("WD")
            A(f"v_mfma_f32_16x16x32_bf16 v[{DY}:{DY + 3}], v[{AH}:{AH + 3}], v[{WD}:{WD + 3}], 0")
        if wmode:
            A("s_waitcnt lgkmcnt(0)")
            A("v_mov_b32 v48, v10")
            A("v_mov_b32 v49, v11")
            if wmode == 2:
                wblock()
                A(f"s_mov_b32 s58, {SPIN_MAX}")
            wcalc()
            need("WD")
            A(f"v_mfma_f32_16x16x32_bf16 v[{DY}:{DY + 3}], v[{AH}:{AH + 3}], v[{WD}:{WD + 3}], 0")
            A("s_mov_b64 exec, s[60:61]")
            A(f"v_mul_f32 v{OG}, v{vWT}, v48")
            A(f"v_mul_f32 v{OG + 2}, v{vWT}, v49")
        else:
            A("s_mov_b64 exec, s[60:61]")
            A("s_waitcnt lgkmcnt(0)")
            A(f"v_mul_f32 v{OG}, v{vWT}, v10")
            A(f"v_mul_f32 v{OG + 2}, v{vWT}, v11")
        poll("O", KR, vOG, 62, OG, OG + 2, sl1, True, "L_doneO", scale=vWT, far=sl1a, thr=thr1)
        LBL("L_doneO")
        A("s_mov_b64 exec, -1")
        STAMPX("ook")
        A(f"v_permlane32_swap_b32 v{OG}, v{OG + 2}")
        A(f"v_add_f32 v10, v{OG}, v{OG + 2}")
        cross_reduce("v_add_f32", 10, 11, swaps=("16",))
        A("s_nop 1")
        dpp("v_add_f32", 10, 10, 10, "row_ror:8")
        A("v_cvt_pk_bf16_f32 v10, v10, v10")
        A("s_nop 1")
        for k in range(2):
            for b4 in range(2):
                for b in range(2):
                    p = 4 * b4 + 2 * b + k
                    A(f"v_mov_b32_dpp v{16 + k}, v10 row_newbcast:{p} row_mask:{(0x5, 0xa)[b4]:#x} bank_mask:{(0x3, 0xc)[b]:#x}")
    for r in range(4):
        A(f"v_and_b32 v{48 + r}, v16, v{ME[r]}")
    for r in range(2):
        A(f"v_and_b32 v{52 + r}, v17, v{ME[r]}")
    A(f"v_mfma_f32_16x16x32_bf16 v[{DY}:{DY + 3}], v[48:51], v[{WO0}:{WO0 + 3}], v[{DY}:{DY + 3}]")
    for r in range(2, 4):
        A(f"v_and_b32 v{52 + r}, v17, v{ME[r]}")
    A(f"s_cmp_ge_u32 s{sW}, 4")
    A("s_nop 0")
    A(f"v_mfma_f32_16x16x32_bf16 v[{DY}:{DY + 3}], v[52:55], v[{WO1}:{WO1 + 3}], v[{DY}:{DY + 3}]")
    A("s_mov_b64 exec, s[40:41]")
    A("s_nop 6")
    A(f"ds_write_b128 v25, v[{DY}:{DY + 3}] offset:{YP}")
    A("s_mov_b64 exec, -1")
    A("s_waitcnt lgkmcnt(0)")
    A("s_barrier")
    STAMPX("bar5")
    A("s_cbranch_scc1 L_final")
    A(f"ds_read_b64 v[16:17], v22 offset:{YP}")
    A(f"ds_read_b64 v[30:31], v22 offset:{YP + 8 * YPS}")
    A("s_waitcnt lgkmcnt(0)")
    A("v_add_f32 v14, v17, v31")
    A("v_add_f32 v12, v16, v30")
    A("s_nop 0")
    row_reduce("v_add_f32", [14, 12], steps[:3], tail=False)
    A("s_mov_b64 exec, s[54:55]")
    C("plain copy first (seen through the shared L2 by a reader on the same die), then the write-through copy")
    A("global_store_dwordx4 v19, v[12:15], s[30:31]")
    A(f"global_store_dwordx4 v24, v[12:15], s[30:31] {hpol}")
    if stamps:
        A("s_mov_b64 exec, -1")
        STAMPX("end")
        A("s_branch L_stamps")
    else:
        A("s_endpgm")
    LBL("L_final")
    A(f"s_cmp_lg_u32 s{sW}, 4")
    if stamps:
        STAMPX("end")
        A("s_cbranch_scc1 L_stamps")
    else:
        A("s_cbranch_scc1 L_end")
    C("first look at the other heads' pieces; meanwhile the own piece comes straight from LDS into lane h")
    A("s_mov_b64 exec, s[50:51]")
    A(f"global_load_dwordx4 v[{KR + 32}:{KR + 35}], v20, s[30:31] {hpol}")
    A("s_mov_b64 exec, -1")
    A(f"ds_read_b64 v[30:31], v29 offset:{YP}")
    A(f"v_lshlrev_b32 v10, 16, v{XO}")
    A(f"v_and_b32 v11, 0xffff0000, v{XO}")
    A(f"s_mov_b32 s58, {nfast}")
    A("s_waitcnt lgkmcnt(0)")
    dpp("v_add_f32", 16, 30, 30, steps[0])
    dpp("v_add_f32", 18, 31, 31, steps[0])
    A("s_nop 0")
    row_reduce("v_add_f32", [16, 18], steps[1:], tail=False)
    poll("YA", KR + 32, 20, 50, 16, 18, sl2, True, "L_doneY", far=sl2a, thr=thr2)
    A(f"s_mov_b32 s58, {SPIN_MAX}")
    poll("Y", KR + 32, 26, 50, 16, 18, sl2, False, "L_doneY")
    LBL("L_doneY")
    A("s_mov_b64 exec, -1")
    STAMPX("yok")
    A("v_permlane16_swap_b32 v16, v18")
    A("v_add_f32 v16, v16, v18")
    A("s_cmp_lg_u32 s2, 0")
    A("s_nop 0")
    row_reduce("v_add_f32", [16], tail=False)
    A("s_nop 0")
    A("v_readlane_b32 s56, v16, 16")
    A("v_add_f32 v10, v10, v16")
    A("s_mov_b64 exec, 1")
    A("v_add_f32 v11, s56, v11")
    A("v_cvt_pk_bf16_f32 v10, v10, v11")
    A("global_store_dword v27, v10, s[26:27]")
    A("s_cbranch_scc1 L_nowbump")
    C("every workgroup has read the epoch word by now: advance it for the next launch")
    A(f"v_mov_b32 v12, {W_OFF}")
    A(f"global_store_dword v12, v13, s[30:31] {hpol}")
    LBL("L_nowbump")
    if stamps:
        A("s_mov_b64 exec, -1")
        STAMPX("end")
        LBL("L_stamps")
        ns = len(stamp_idx)
        nq = (ns + 1) // 2
        A("s_waitcnt lgkmcnt(0)")
        A("s_lshl_b32 s56, s2, 3")
        A(f"s_add_u32 s56, s56, s{sW}")
        A(f"s_mul_i32 s56, s56, {nq * 16}")
        A(f"s_add_u32 s56, s56, {STAMP:#x}")
        A("v_mov_b32 v10, s56")
        A("s_mov_b64 exec, 1")
        for q in range(nq):
            for j in range(4):
                k = 4 * q + j
                if k >= 2 * ns:
                    k -= 2
                A(f"v_mov_b32 v{12 + j}, s{SB + k}")
            A(f"global_store_dwordx4 v10, v[12:15], s[30:31] offset:{q * 16}")
            A("s_nop 2")
        print("stamps per wave:", nq * 2, list(stamp_idx), file=sys.stderr)
    LBL("L_end")
    A("s_endpgm")
    LBL("L_codeend")
    L.append('.section .rodata,"a"')
    L.append(".p2align 6")
    L.append(f".amdhsa_kernel {NAME}_kernel")
    L.append("  .amdhsa_next_free_vgpr 256")
    L.append("  .amdhsa_next_free_sgpr 102")
    L.append("  .amdhsa_accum_offset 256")
    L.append("  .amdhsa_group_segment_fixed_size 0")
    L.append("  .amdhsa_kernarg_size 96")
    L.append("  .amdhsa_user_sgpr_count 2")
    L.append("  .amdhsa_user_sgpr_kernarg_segment_ptr 1")
    L.append("  .amdhsa_system_sgpr_workgroup_id_x 1")
    L.append("  .amdhsa_float_denorm_mode_32 3")
    L.append(".end_amdhsa_kernel")
    return "\n".join(L) + "\n"


if __name__ == "__main__":
    out = sys.argv[1]
    kw = {}
    for a in sys.argv[2:]:
        k, v = a.split("=")
        try:
            v = int(v)
        except ValueError:
            pass
        kw[k] = v
    open(out, "w").write(gen(**kw))
```
